```python
import torch

def _softmax(x, axis=-1):
    return torch.softmax(x, dim=axis)
def _gelu(x):
    return torch.nn.functional.gelu(x, approximate="tanh")
def _silu(x):
    return torch.nn.functional.silu(x)
def _sigmoid(x):
    return torch.sigmoid(x)
def _layernorm(x, axis=-1, eps=1e-5):
    m = x.mean(dim=axis, keepdim=True)
    v = x.var(dim=axis, keepdim=True, unbiased=False)
    return (x - m) / torch.sqrt(v + eps)
def _scatter_add(tgt, idx, src, axis=0):
    return tgt.clone().index_add_(axis, idx, src)
def _segment_sum(src, seg, n):
    out = torch.zeros((n,) + src.shape[1:], dtype=src.dtype)
    return out.index_add_(0, seg, src)
def _pad(x, pw):
    flat = tuple(v for pair in reversed(pw) for v in pair)
    return torch.nn.functional.pad(x, flat)

kernel_name = 'recurrent_scan__gqa_block_cached__glu_gated_geglu__decode'

def setup_inputs():

    _w = (lambda a: (lambda t: t.to(torch.bfloat16) if t.is_floating_point() else t)(torch.as_tensor(a)))
    def _A_setup():
        B, Sq, D = 4, 1, 1024
        Hq, Hkv, Sk, Dh = 32, 4, 8192, 128
        assert Hq % Hkv == 0, (Hq, Hkv)
        return {
            "x": _w((lambda *s: torch.randn(*s, dtype=torch.bfloat16) * 0.4)(B, Sq, D)),
            "k_cache": _w((lambda *s: torch.randn(*s, dtype=torch.bfloat16) * 1.6)(B, Hkv, Sk, Dh)),
            "v_cache": _w((lambda *s: torch.randn(*s, dtype=torch.bfloat16) * 1.6)(B, Hkv, Sk, Dh)),
            "wq": _w((lambda *s: torch.randn(*s, dtype=torch.bfloat16) * 1.6)(D, Hq * Dh) * (D ** -0.5)),
            "wo": _w((lambda *s: torch.randn(*s, dtype=torch.bfloat16) * 1.6)(Hq * Dh, D) * ((Hq * Dh) ** -0.5)),
        }
    _A_in = _A_setup()

    def _B_setup():
        B, S, Dm, Df = 4, 1, 1024, 3584
        return {
            "x": _w((lambda *s: torch.randn(*s, dtype=torch.bfloat16) * 0.4)(B, S, Dm)),
            "w_gate": _w((lambda *s: torch.randn(*s, dtype=torch.bfloat16) * 1.6)(Dm, Df) * (Dm ** -0.5)),
            "w_up": _w((lambda *s: torch.randn(*s, dtype=torch.bfloat16) * 1.6)(Dm, Df) * (Dm ** -0.5)),
            "w_down": _w((lambda *s: torch.randn(*s, dtype=torch.bfloat16) * 1.6)(Df, Dm) * (Df ** -0.5)),
        }
    _B_in = _B_setup()

    return {
        "A_x": _A_in["x"],
        "A_k_cache": _A_in["k_cache"],
        "A_v_cache": _A_in["v_cache"],
        "A_wq": _A_in["wq"],
        "A_wo": _A_in["wo"],
        "B_x": _B_in["x"],
        "B_w_gate": _B_in["w_gate"],
        "B_w_up": _B_in["w_up"],
        "B_w_down": _B_in["w_down"],
    }

def reference(A_x, A_k_cache, A_v_cache, A_wq, A_wo, B_x, B_w_gate, B_w_up, B_w_down):
    def _A_ref(x, k_cache, v_cache, wq, wo):
        B, Sq, D = x.shape
        Hq, Dh = 32, 128
        Hkv = k_cache.shape[1]
        rep = Hq // Hkv
        q = (lambda x, *d: x.permute(*d))((x @ wq).reshape(B, Sq, Hq, Dh), 0, 2, 1, 3)
        k = (lambda x, n, axis: torch.repeat_interleave(x, n, dim=axis))(k_cache, rep, axis=1)
        v = (lambda x, n, axis: torch.repeat_interleave(x, n, dim=axis))(v_cache, rep, axis=1)
        scores = torch.einsum("bhqd,bhkd->bhqk", q, k) * (Dh ** -0.5)
        p = _softmax(scores, axis=-1)
        o = torch.einsum("bhqk,bhkd->bhqd", p, v)
        return (lambda x, *d: x.permute(*d))(o, 0, 2, 1, 3).reshape(B, Sq, Hq * Dh) @ wo

    def _B_ref(x, w_gate, w_up, w_down):
        g = torch.einsum("bsd,df->bsf", x, w_gate)
        u = torch.einsum("bsd,df->bsf", x, w_up)
        h = _gelu(g) * u
        return torch.einsum("bsf,fd->bsd", h, w_down)

    x = A_x
    xn = _layernorm(x, axis=-1)
    s = _A_ref(xn, A_k_cache, A_v_cache, A_wq, A_wo)
    g = _silu(_B_ref(xn, B_w_gate, B_w_up, B_w_down))
    return x + s * g
```

```python
import struct, sys

NAME = "recurrent_scan__gqa_block_cached__glu_gated_geglu__decode_kernel"

def f32hex(x):
    return "0x%08x" % struct.unpack("<I", struct.pack("<f", x))[0]

EPOCH = 0
FQ = 0x1000
FGU = 0x2000
FS = 0x3000
QP = 0x100000
GUP = 0x200000
OREC = 0x400000
SP = 0x800000

L_QRDY = 0
L_OCNT = 4
L_ISS = 8
L_ML = 0x100
L_QS = 0x400
L_AF = 0xC00
L_OP = 0x2000
L_WT = 0xA000
LDS_BYTES = 0xA000 + 3 * 0x8000

S_TAG = 40
S_TMO = 41
SRD_K, SRD_V, SRD_W, SRD_WS, SRD_X, SRD_OUT = 44, 48, 52, 56, 60, 64
S_SELLO, S_SELHI, S_SCALE, S_LOG2E = 68, 69, 70, 71

class A:
    def __init__(self):
        self.l = []
        self.n = 0
    def __call__(self, s):
        self.l.append("    " + s)
    def label(self, s):
        self.l.append(s + ":")
    def uniq(self, p):
        self.n += 1
        return f"L_{p}_{self.n}"

def vr(b, n=4):
    return f"v[{b}:{b+n-1}]"

def srd(b):
    return f"s[{b}:{b+3}]"

def mk_srd(a, d, ptr, nbytes):
    a(f"s_mov_b32 s{d}, s{ptr}")
    a(f"s_mov_b32 s{d+1}, s{ptr+1}")
    a(f"s_mov_b32 s{d+2}, {nbytes}")
    a(f"s_mov_b32 s{d+3}, 0x00020000")

def lds_wait(a, addr, n, vtmp=2, vz=3):
    lp = a.uniq("lw"); dn = a.uniq("lwd")
    a(f"s_mov_b32 s{S_TMO}, 400000")
    a(f"v_mov_b32 v{vz}, 0")
    a.label(lp)
    a(f"ds_read_b32 v{vtmp}, v{vz} offset:{addr}")
    a("s_waitcnt lgkmcnt(0)")
    a(f"v_readfirstlane_b32 s4, v{vtmp}")
    a("s_nop 3")
    a(f"s_cmp_ge_u32 s4, {n}")
    a(f"s_cbranch_scc1 {dn}")
    a("s_sleep 1")
    a(f"s_sub_u32 s{S_TMO}, s{S_TMO}, 1")
    a(f"s_cmp_lg_u32 s{S_TMO}, 0")
    a(f"s_cbranch_scc1 {lp}")
    a.label(dn)

def lds_inc(a, addr, v1=2, v2=3):
    a("s_mov_b64 exec, 1")
    a(f"v_mov_b32 v{v1}, 0")
    a(f"v_mov_b32 v{v2}, 1")
    a(f"ds_add_u32 v{v1}, v{v2} offset:{addr}")
    a("s_mov_b64 exec, -1")

def poll_flags(a, voff, soff_reg, vdst, width=1, tagreg_idx=0, execmask=None):
    lp = a.uniq("pl"); dn = a.uniq("pld")
    a(f"s_mov_b32 s{S_TMO}, 100000")
    if execmask is not None:
        a(f"s_mov_b64 exec, {execmask}")
    a.label(lp)
    if width == 1:
        a(f"buffer_load_dword v{vdst}, v{voff}, {srd(SRD_WS)}, s{soff_reg} offen sc1")
    else:
        a(f"buffer_load_dwordx4 {vr(vdst)}, v{voff}, {srd(SRD_WS)}, s{soff_reg} offen sc1")
    a("s_waitcnt vmcnt(0)")
    a(f"v_cmp_ne_u32 vcc, s{S_TAG}, v{vdst+tagreg_idx}")
    a("s_nop 3")
    a("s_cmp_eq_u64 vcc, 0")
    a(f"s_cbranch_scc1 {dn}")
    a("s_sleep 2")
    a(f"s_sub_u32 s{S_TMO}, s{S_TMO}, 1")
    a(f"s_cmp_lg_u32 s{S_TMO}, 0")
    a(f"s_cbranch_scc1 {lp}")
    a.label(dn)
    if execmask is not None:
        a("s_mov_b64 exec, -1")

def rne(a, dst, src):
    a(f"v_cvt_pk_bf16_f32 v{dst}, v{src}, v{src}")
    a(f"v_lshlrev_b32 v{dst}, 16, v{dst}")

def row_reduce_add(a, v):
    for r in (8, 4, 2, 1):
        a("s_nop 1")
        a(f"v_add_f32_dpp v{v}, v{v}, v{v} row_ror:{r} row_mask:0xf bank_mask:0xf")

def row_reduce_max(a, v):
    for r in (8, 4, 2, 1):
        a("s_nop 1")
        a(f"v_max_f32_dpp v{v}, v{v}, v{v} row_ror:{r} row_mask:0xf bank_mask:0xf")

def xg_reduce(a, v, t, op):
    a(f"v_mov_b32 v{t}, v{v}")
    a("s_nop 1")
    a(f"v_permlane32_swap_b32 v{v}, v{t}")
    a("s_nop 1")
    a(f"{op} v{v}, v{v}, v{t}")
    a(f"v_mov_b32 v{t}, v{v}")
    a("s_nop 1")
    a(f"v_permlane16_swap_b32 v{v}, v{t}")
    a("s_nop 1")
    a(f"{op} v{v}, v{v}, v{t}")

W_T0, W_T1, W_ACC, W_TB, W_AF, W_M2 = 8, 40, 72, 104, 120, 136

def wjob_issue(a, rs, s_base, lds_slot):
    for tb in range(4):
        for i in range(8):
            a(f"s_add_u32 s5, s{s_base}, {(32*tb+i)*rs}")
            a(f"s_mov_b32 m0, {lds_slot + (tb*8+i)*1024}")
            a("s_nop 0")
            a(f"buffer_load_dwordx4 v1, {srd(SRD_W)}, s5 offen nt lds")

def wjob_voff(a, rs):
    a("v_lshrrev_b32 v2, 4, v0")
    a(f"s_mov_b32 s5, {8*rs}")
    a("v_mul_lo_u32 v2, v2, s5")
    a("v_and_b32 v1, 15, v0")
    a("v_lshlrev_b32 v1, 4, v1")
    a("v_add_u32 v1, v1, v2")

def wjob_consume(a, lds_slot):
    a("v_lshlrev_b32 v2, 4, v0")
    def rd(tb, T):
        for i in range(8):
            off = lds_slot + (tb*8+i)*1024
            a(f"ds_read_b128 {vr(T+4*i)}, v3 offset:{(tb*8+i)*1024}")
    a(f"v_add_u32 v3, {lds_slot}, v2")
    rd(0, W_T0)
    for tb in range(4):
        T = W_T0 if tb % 2 == 0 else W_T1
        if tb < 3:
            rd(tb+1, W_T1 if tb % 2 == 0 else W_T0)
            a("s_waitcnt lgkmcnt(8)")
        else:
            a("s_waitcnt lgkmcnt(0)")
        for w in range(4):
            TB = W_TB + 8*(w % 2)
            for p in range(4):
                a(f"v_perm_b32 v{TB+p}, v{T+4*(2*p+1)+w}, v{T+4*(2*p)+w}, s{S_SELLO}")
            for p in range(4):
                a(f"v_perm_b32 v{TB+4+p}, v{T+4*(2*p+1)+w}, v{T+4*(2*p)+w}, s{S_SELHI}")
            a("s_nop 1")
            for h in range(2):
                t = 2*w + h
                c = "0" if tb == 0 else vr(W_ACC+4*t)
                a(f"v_mfma_f32_16x16x32_bf16 {vr(W_ACC+4*t)}, {vr(W_AF+4*tb)}, {vr(TB+4*h)}, {c}")

def wjob_store(a, s_out, mstride, s_flag):
    a("s_nop 7")
    a("s_nop 1")
    R = W_T0
    for m in range(4):
        for t in range(8):
            a(f"v_mov_b32 v{R+8*m+t}, v{W_ACC+4*t+m}")
    a("v_lshlrev_b32 v2, 5, v0")
    a("s_mov_b64 exec, 0xffff")
    for m in range(4):
        a(f"s_add_u32 s5, s{s_out}, {m*mstride}")
        a(f"buffer_store_dwordx4 {vr(R+8*m)}, v2, {srd(SRD_WS)}, s5 offen sc1")
        a(f"buffer_store_dwordx4 {vr(R+8*m+4)}, v2, {srd(SRD_WS)}, s5 offen offset:16 sc1")
    a("s_waitcnt vmcnt(0)")
    a("s_mov_b64 exec, 1")
    a("v_mov_b32 v2, 0")
    a(f"v_mov_b32 v3, s{S_TAG}")
    a(f"buffer_store_dword v3, v2, {srd(SRD_WS)}, s{s_flag} offen sc1")
    a("s_mov_b64 exec, -1")

def ln_issue(a, s_r0x2):
    a("v_lshrrev_b32 v2, 4, v0")
    a("v_lshlrev_b32 v2, 11, v2")
    a("v_and_b32 v3, 15, v0")
    a("v_lshlrev_b32 v3, 7, v3")
    a("v_add_u32 v2, v2, v3")
    for k in range(8):
        a(f"buffer_load_dwordx4 {vr(W_T0+4*k)}, v2, {srd(SRD_X)}, 0 offen offset:{16*k}")
    a("v_and_b32 v3, 3, v0")
    a("v_lshlrev_b32 v3, 11, v3")
    a("v_lshrrev_b32 v4, 4, v0")
    a("v_lshlrev_b32 v4, 4, v4")
    a("v_add_u32 v3, v3, v4")
    for tb in range(4):
        a(f"buffer_load_dwordx4 {vr(W_AF+4*tb)}, v3, {srd(SRD_X)}, s{s_r0x2} offen offset:{64*tb}")

def ln_compute(a):
    X = W_T0
    a("v_mov_b32 v2, 0")
    a("v_mov_b32 v3, 0")
    for r in range(32):
        a(f"v_lshlrev_b32 v4, 16, v{X+r}")
        a(f"v_and_b32 v5, 0xffff0000, v{X+r}")
        a("v_add_f32 v2, v2, v4")
        a("v_add_f32 v3, v3, v5")
    a("v_add_f32 v2, v2, v3")
    row_reduce_add(a, 2)
    a(f"v_mul_f32 v2, {f32hex(1.0/1024)}, v2")
    a("v_mov_b32 v3, 0")
    a("v_mov_b32 v6, 0")
    for r in range(32):
        a(f"v_lshlrev_b32 v4, 16, v{X+r}")
        a(f"v_and_b32 v5, 0xffff0000, v{X+r}")
        a("v_sub_f32 v4, v4, v2")
        a("v_sub_f32 v5, v5, v2")
        a("v_fmac_f32 v3, v4, v4")
        a("v_fmac_f32 v6, v5, v5")
    a("v_add_f32 v3, v3, v6")
    row_reduce_add(a, 3)
    a(f"v_mul_f32 v3, {f32hex(1.0/1024)}, v3")
    rne(a, 2, 2)
    rne(a, 3, 3)
    a(f"v_add_f32 v3, {f32hex(1e-5)}, v3")
    rne(a, 3, 3)
    a("v_sqrt_f32 v3, v3")
    a("s_nop 0")
    rne(a, 3, 3)
    a("v_and_b32 v4, 3, v0")
    a("v_lshlrev_b32 v4, 6, v4")
    a("ds_bpermute_b32 v2, v4, v2")
    a("ds_bpermute_b32 v3, v4, v3")
    a("s_waitcnt lgkmcnt(0)")
    a("v_rcp_f32 v4, v3")
    a("s_nop 0")
    for r in range(16):
        R = W_AF + r
        a(f"v_lshlrev_b32 v5, 16, v{R}")
        a(f"v_and_b32 v6, 0xffff0000, v{R}")
        a("v_sub_f32 v5, v5, v2")
        a("v_sub_f32 v6, v6, v2")
        a("v_cvt_pk_bf16_f32 v7, v5, v6")
        a("v_lshlrev_b32 v5, 16, v7")
        a("v_and_b32 v6, 0xffff0000, v7")
        a(f"v_mul_f32 v{W_M2}, v5, v4")
        a(f"v_mul_f32 v{W_M2+1}, v6, v4")
        a(f"v_fma_f32 v5, -v{W_M2}, v3, v5")
        a(f"v_fma_f32 v6, -v{W_M2+1}, v3, v6")
        a(f"v_fma_f32 v{W_M2}, v5, v4, v{W_M2}")
        a(f"v_fma_f32 v{W_M2+1}, v6, v4, v{W_M2+1}")
        a(f"v_cvt_pk_bf16_f32 v{R}, v{W_M2}, v{W_M2+1}")

def af_via_lds(a, vpk, lds_af):
    a("v_lshlrev_b32 v2, 4, v0")
    a(f"ds_write_b128 v2, {vr(vpk)} offset:{lds_af}")
    a("v_and_b32 v2, 3, v0")
    a("v_lshlrev_b32 v2, 8, v2")
    a("v_lshrrev_b32 v3, 4, v0")
    a("v_lshlrev_b32 v3, 4, v3")
    a("v_add_u32 v2, v2, v3")
    a("s_waitcnt lgkmcnt(0)")
    for tb in range(4):
        a(f"ds_read_b128 {vr(W_AF+4*tb)}, v2 offset:{lds_af + 64*tb}")
    a("s_waitcnt lgkmcnt(0)")

def gen(path, depth=8):
    a = A()
    hdr = open("recurrent_scan__gqa_block_cached__glu_gated_geglu__decode.s.ref").read().split("\n")
    top = [l for l in hdr if l.startswith(";") and "@launch" not in l]
    out = top + [f"; @launch grid=(256,1,1) block=(768,1,1) lds={LDS_BYTES}"]
    out += ['.amdgcn_target "amdgcn-amd-amdhsa--gfx950"', ".text", f".globl {NAME}", ".p2align 8",
            f".type {NAME},@function", f"{NAME}:"]
    a("s_cmp_ge_u32 s2, 256")
    a("s_cbranch_scc1 L_end")
    a("s_load_dwordx16 s[16:31], s[0:1], 0")
    a("s_load_dwordx8 s[32:39], s[0:1], 64")
    a("v_lshrrev_b32 v1, 6, v0")
    a("v_and_b32 v0, 63, v0")
    a("s_nop 0")
    a("v_readfirstlane_b32 s3, v1")
    a(f"s_mov_b32 s{S_SELLO}, 0x05040100")
    a(f"s_mov_b32 s{S_SELHI}, 0x07060302")
    a(f"s_mov_b32 s{S_SCALE}, {f32hex(128 ** -0.5)}")
    a(f"s_mov_b32 s{S_LOG2E}, {f32hex(1.4426950408889634)}")
    a("s_waitcnt lgkmcnt(0)")
    a(f"s_load_dword s{S_TAG}, s[38:39], {EPOCH}")
    mk_srd(a, SRD_K, 18, 0x2000000)
    mk_srd(a, SRD_V, 20, 0x2000000)
    mk_srd(a, SRD_WS, 38, 0x10000000)
    mk_srd(a, SRD_X, 16, 8192)
    mk_srd(a, SRD_OUT, 34, 8192)
    a("s_cmp_ge_u32 s3, 8")
    a("s_cbranch_scc1 L_notattn")

    K0, V0, Q0, S0 = 8, 72, 136, 152
    a("s_lshl_b32 s6, s2, 17")
    a("s_lshl_b32 s5, s3, 14")
    a("s_add_u32 s6, s6, s5")
    a("v_and_b32 v2, 15, v0")
    a("v_lshrrev_b32 v3, 4, v0")
    a("v_lshlrev_b32 v4, 8, v2")
    a("v_lshl_add_u32 v4, v3, 4, v4")
    a("v_lshlrev_b32 v5, 10, v3")
    a("v_lshl_add_u32 v5, v2, 4, v5")
    loads = []
    for kt in range(4):
        for c in range(4):
            loads.append((SRD_K, 4, K0+16*kt+4*c, kt*4096, c*64))
    for u in range(2):
        for i in range(8):
            loads.append((SRD_V, 5, V0+32*u+4*i, u*8192+(i >> 2)*4096, (i & 3)*256))
    for n, (sr, vo, dst, so, io) in enumerate(loads):
        if n == depth:
            a("s_waitcnt lgkmcnt(0)")
            a("s_barrier")
        if n >= depth:
            a(f"s_waitcnt vmcnt({depth-1})")
        a(f"s_add_u32 s7, s6, {so}")
        a(f"buffer_load_dwordx4 {vr(dst)}, v{vo}, {srd(sr)}, s7 offen offset:{io} nt")
    if depth >= len(loads):
        a("s_waitcnt lgkmcnt(0)")
        a("s_barrier")
    a(f"s_add_u32 s{S_TAG}, s{S_TAG}, 1")
    lds_inc(a, L_ISS)
    lds_wait(a, L_QRDY, 1)
    a("v_and_b32 v2, 7, v0")
    a("v_lshlrev_b32 v2, 8, v2")
    a("v_lshrrev_b32 v3, 4, v0")
    a("v_lshl_add_u32 v2, v3, 4, v2")
    for c in range(4):
        a(f"ds_read_b128 {vr(Q0+4*c)}, v2 offset:{L_QS + 64*c}")
    a("s_waitcnt vmcnt(16) lgkmcnt(0)")
    for kt in range(4):
        for c in range(4):
            cc = "0" if c == 0 else vr(S0+4*kt)
            a(f"v_mfma_f32_16x16x32_bf16 {vr(S0+4*kt)}, {vr(K0+16*kt+4*c)}, {vr(Q0+4*c)}, {cc}")
    a("s_nop 7")
    a("s_nop 1")
    for p in range(8):
        x, y = S0+2*p, S0+2*p+1
        a(f"v_cvt_pk_bf16_f32 v2, v{x}, v{y}")
        a(f"v_lshlrev_b32 v{x}, 16, v2")
        a(f"v_and_b32 v{y}, 0xffff0000, v2")
        a(f"v_mul_f32 v{x}, s{S_SCALE}, v{x}")
        a(f"v_mul_f32 v{y}, s{S_SCALE}, v{y}")
        a(f"v_cvt_pk_bf16_f32 v2, v{x}, v{y}")
        a(f"v_lshlrev_b32 v{x}, 16, v2")
        a(f"v_and_b32 v{y}, 0xffff0000, v2")
    a(f"v_max3_f32 v6, v{S0}, v{S0+1}, v{S0+2}")
    for i in range(3, 15, 2):
        a(f"v_max3_f32 v6, v6, v{S0+i}, v{S0+i+1}")
    a(f"v_max_f32 v6, v6, v{S0+15}")
    xg_reduce(a, 6, 7, "v_max_f32")
    a(f"v_mul_f32 v6, s{S_LOG2E}, v6")
    for i in range(16):
        a(f"v_fma_f32 v{S0+i}, v{S0+i}, s{S_LOG2E}, -v6")
    for i in range(16):
        a(f"v_exp_f32 v{S0+i}, v{S0+i}")
    a("s_nop 0")
    a(f"v_add_f32 v7, v{S0}, v{S0+1}")
    for i in range(2, 16):
        a(f"v_add_f32 v7, v7, v{S0+i}")
    xg_reduce(a, 7, 2, "v_add_f32")
    P0 = 56
    for u in range(2):
        for q in range(4):
            a(f"v_cvt_pk_bf16_f32 v{P0+4*u+q}, v{S0+8*u+2*q}, v{S0+8*u+2*q+1}")
    O0, TB0 = 8, 40
    for u in range(2):
        a(f"s_waitcnt vmcnt({8 if u == 0 else 0})")
        for w in range(4):
            TB = TB0 + 8*(w % 2)
            for p in range(4):
                a(f"v_perm_b32 v{TB+p}, v{V0+32*u+4*(2*p+1)+w}, v{V0+32*u+4*(2*p)+w}, s{S_SELLO}")
            for p in range(4):
                a(f"v_perm_b32 v{TB+4+p}, v{V0+32*u+4*(2*p+1)+w}, v{V0+32*u+4*(2*p)+w}, s{S_SELHI}")
            a("s_nop 1")
            for h in range(2):
                t = 2*w+h
                cc = "0" if u == 0 else vr(O0+4*t)
                a(f"v_mfma_f32_16x16x32_bf16 {vr(O0+4*t)}, {vr(P0+4*u)}, {vr(TB+4*h)}, {cc}")
    a("s_nop 7")
    a("s_nop 1")
    R0 = 72
    for r in range(4):
        for t in range(8):
            a(f"v_mov_b32 v{R0+8*r+t}, v{O0+4*t+r}")
    a("v_lshrrev_b32 v2, 4, v0")
    a("v_lshlrev_b32 v2, 11, v2")
    a("v_and_b32 v3, 15, v0")
    a("v_lshl_add_u32 v2, v3, 5, v2")
    a("s_lshl_b32 s5, s3, 12")
    a("v_add_u32 v2, s5, v2")
    a("s_mov_b32 exec_lo, -1"); a("s_mov_b32 exec_hi, 0")
    for r in range(4):
        a(f"ds_write_b128 v2, {vr(R0+8*r)} offset:{L_OP + r*512}")
        a(f"ds_write_b128 v2, {vr(R0+8*r+4)} offset:{L_OP + r*512 + 16}")
    a("s_mov_b64 exec, -1")
    a("v_and_b32 v2, 7, v0")
    a("v_lshlrev_b32 v2, 3, v2")
    a("s_lshl_b32 s5, s3, 6")
    a("v_add_u32 v2, s5, v2")
    a(f"ds_write_b64 v2, v[6:7] offset:{L_ML}")
    lds_inc(a, L_OCNT)
    lds_wait(a, L_OCNT, 8)
    a("s_lshl_b32 s5, s3, 3")
    a("v_mov_b32 v2, s5")
    for w in range(8):
        a(f"ds_read_b64 v[{8+2*w}:{9+2*w}], v2 offset:{L_ML + w*64}")
    a("s_lshl_b32 s5, s3, 9")
    a("v_lshlrev_b32 v3, 3, v0")
    a("v_add_u32 v3, s5, v3")
    for w in range(8):
        a(f"ds_read_b64 v[{24+2*w}:{25+2*w}], v3 offset:{L_OP + w*4096}")
    a("s_waitcnt lgkmcnt(0)")
    a("v_max3_f32 v4, v8, v10, v12")
    a("v_max3_f32 v4, v4, v14, v16")
    a("v_max3_f32 v4, v4, v18, v20")
    a("v_max_f32 v4, v4, v22")
    for w in range(8):
        a(f"v_sub_f32 v{8+2*w}, v{8+2*w}, v4")
    for w in range(8):
        a(f"v_exp_f32 v{8+2*w}, v{8+2*w}")
    a("s_nop 0")
    a("v_mul_f32 v5, v8, v9")
    a("v_mul_f32 v40, v8, v24")
    a("v_mul_f32 v41, v8, v25")
    for w in range(1, 8):
        a(f"v_fmac_f32 v5, v{8+2*w}, v{9+2*w}")
        a(f"v_fmac_f32 v40, v{8+2*w}, v{24+2*w}")
        a(f"v_fmac_f32 v41, v{8+2*w}, v{25+2*w}")
    a("s_lshr_b32 s5, s2, 4")
    a("s_and_b32 s5, s5, 3")
    a("s_lshl_b32 s5, s5, 3")
    a("s_add_u32 s5, s5, s3")
    a("s_lshl_b32 s5, s5, 2")
    a("s_lshr_b32 s6, s2, 6")
    a("s_add_u32 s5, s5, s6")
    a("s_lshl_b32 s5, s5, 4")
    a("s_and_b32 s6, s2, 15")
    a("s_add_u32 s5, s5, s6")
    a("s_lshl_b32 s5, s5, 10")
    a(f"s_add_u32 s5, s5, {OREC}")
    a("v_lshlrev_b32 v3, 3, v0")
    a(f"buffer_store_dwordx2 v[40:41], v3, {srd(SRD_WS)}, s5 offen sc1")
    a(f"v_mov_b32 v6, s{S_TAG}")
    a(f"v_mov_b32 v7, s{S_TAG}")
    a("v_mov_b32 v3, 0")
    a("s_waitcnt vmcnt(0)")
    a("s_mov_b64 exec, 1")
    a(f"buffer_store_dwordx4 v[4:7], v3, {srd(SRD_WS)}, s5 offen offset:512 sc1")
    a("s_endpgm")

    a.label("L_notattn")
    a("s_cmp_eq_u32 s3, 11")
    a("s_cbranch_scc1 L_comm")
    a("s_cmp_eq_u32 s3, 8")
    a("s_cbranch_scc1 L_w8")
    a("s_cmp_lt_u32 s2, 224")
    a("s_cbranch_scc1 L_ffn")
    a("s_waitcnt lgkmcnt(0)")
    a("s_barrier")
    a("s_endpgm")
    a.label("L_ffn")
    a("s_cmp_eq_u32 s3, 9")
    a("s_cselect_b32 s52, s28, s30")
    a("s_cselect_b32 s53, s29, s31")
    a(f"s_mov_b32 s54, {1024*3584*2}")
    a("s_mov_b32 s55, 0x00020000")
    a("s_lshr_b32 s8, s2, 3")
    a("s_and_b32 s9, s2, 7")
    a("s_lshl_b32 s10, s9, 8")
    ln_issue(a, 10)
    wjob_voff(a, 7168)
    a(f"s_mul_i32 s11, s9, {128*7168}")
    a("s_lshl_b32 s12, s8, 8")
    a("s_add_u32 s11, s11, s12")
    a("s_sub_u32 s13, s3, 8")
    a("s_lshl_b32 s13, s13, 15")
    a(f"s_add_u32 s13, s13, {L_WT}")
    for tb in range(4):
        for i in range(8):
            a(f"s_add_u32 s5, s11, {(32*tb+i)*7168}")
            a(f"s_add_u32 s14, s13, {(tb*8+i)*1024}")
            a("s_mov_b32 m0, s14")
            a("s_nop 0")
            a(f"buffer_load_dwordx4 v1, {srd(SRD_W)}, s5 offen nt lds")
    a("s_waitcnt lgkmcnt(0)")
    a("s_barrier")
    a(f"s_add_u32 s{S_TAG}, s{S_TAG}, 1")
    a("s_waitcnt vmcnt(32)")
    ln_compute(a)
    a("s_waitcnt vmcnt(0)")
    a("v_lshlrev_b32 v2, 4, v0")
    a("v_add_u32 v3, s13, v2")
    wjob_consume_dyn(a)
    a("s_sub_u32 s12, s3, 9")
    a("s_mul_i32 s14, s12, 458752")
    a("s_mul_i32 s15, s9, 57344")
    a("s_add_u32 s14, s14, s15")
    a("s_lshl_b32 s15, s8, 9")
    a("s_add_u32 s14, s14, s15")
    a(f"s_add_u32 s14, s14, {GUP}")
    a("s_lshl_b32 s15, s8, 4")
    a("s_lshl_b32 s12, s12, 3")
    a("s_add_u32 s15, s15, s12")
    a("s_add_u32 s15, s15, s9")
    a("s_lshl_b32 s15, s15, 2")
    a(f"s_add_u32 s15, s15, {FGU}")
    wjob_store(a, 14, 14336, 15)
    a("s_cmp_eq_u32 s3, 9")
    a("s_cbranch_scc1 L_down")
    a("s_endpgm")

    a.label("L_down")
    mk_srd(a, SRD_W, 32, 3584*1024*2)
    wjob_voff(a, 2048)
    lds_wait(a, L_ISS, 8)
    a(f"s_mul_i32 s11, s8, {128*2048}")
    a("s_lshl_b32 s12, s9, 8")
    a("s_add_u32 s11, s11, s12")
    wjob_issue(a, 2048, 11, L_WT + 0x8000)
    a("s_lshl_b32 s12, s8, 6")
    a(f"s_add_u32 s12, s12, {FGU}")
    a("v_lshlrev_b32 v6, 2, v0")
    poll_flags(a, 6, 12, 7, execmask="0xffff")
    a("v_lshrrev_b32 v2, 4, v0")
    a("v_mul_u32_u24 v2, 14336, v2")
    a("v_and_b32 v3, 15, v0")
    a("v_lshl_add_u32 v2, v3, 5, v2")
    a("s_lshl_b32 s12, s8, 9")
    a(f"s_add_u32 s12, s12, {GUP}")
    G = 8
    for mat in range(2):
        for sp in range(8):
            a(f"s_add_u32 s5, s12, {mat*458752 + sp*57344}")
            a(f"buffer_load_dwordx4 {vr(G+64*mat+8*sp)}, v2, {srd(SRD_WS)}, s5 offen sc1")
            a(f"buffer_load_dwordx4 {vr(G+64*mat+8*sp+4)}, v2, {srd(SRD_WS)}, s5 offen offset:16 sc1")
    a("s_waitcnt vmcnt(0)")
    for mat in range(2):
        for sp in range(1, 8):
            for e in range(8):
                a(f"v_add_f32 v{G+64*mat+e}, v{G+64*mat+e}, v{G+64*mat+8*sp+e}")
    c1 = 0.044715
    c2 = -2.0 * 0.7978845608028654 * 1.4426950408889634
    a(f"s_mov_b32 s12, {f32hex(c1)}")
    a(f"s_mov_b32 s13, {f32hex(c2)}")
    for e in range(8):
        g, u, t = G+e, G+64+e, 16+e
        rne(a, g, g)
        rne(a, u, u)
        a(f"v_mul_f32 v{t}, v{g}, v{g}")
        a(f"v_mul_f32 v{t}, v{t}, v{g}")
        a(f"v_fma_f32 v{t}, v{t}, s12, v{g}")
        a(f"v_mul_f32 v{t}, s13, v{t}")
        a(f"v_exp_f32 v{t}, v{t}")
        a("s_nop 0")
        a(f"v_add_f32 v{t}, 1.0, v{t}")
        a(f"v_rcp_f32 v{t}, v{t}")
        a("s_nop 0")
        a(f"v_mul_f32 v{t}, v{t}, v{g}")
        rne(a, t, t)
        a(f"v_mul_f32 v{t}, v{t}, v{u}")
    for q in range(4):
        a(f"v_cvt_pk_bf16_f32 v{24+q}, v{16+2*q}, v{17+2*q}")
    af_via_lds(a, 24, L_AF + 1024)
    wjob_consume(a, L_WT + 0x8000)
    a("s_lshl_b32 s14, s9, 17")
    a("s_add_u32 s15, s8, 32")
    a("s_lshl_b32 s12, s15, 11")
    a("s_add_u32 s14, s14, s12")
    a(f"s_add_u32 s14, s14, {SP}")
    a("s_lshl_b32 s12, s9, 6")
    a("s_add_u32 s15, s15, s12")
    a("s_lshl_b32 s15, s15, 2")
    a(f"s_add_u32 s15, s15, {FS}")
    wjob_store(a, 14, 512, 15)
    a("s_endpgm")

    a.label("L_w8")
    mk_srd(a, SRD_W, 22, 1024*4096*2)
    a("s_lshr_b32 s8, s2, 3")
    a("s_and_b32 s9, s2, 7")
    a("s_lshl_b32 s10, s9, 8")
    ln_issue(a, 10)
    wjob_voff(a, 8192)
    a(f"s_mul_i32 s11, s9, {128*8192}")
    a("s_lshl_b32 s12, s8, 8")
    a("s_add_u32 s11, s11, s12")
    wjob_issue(a, 8192, 11, L_WT)
    a("s_waitcnt lgkmcnt(0)")
    a("s_barrier")
    a(f"s_add_u32 s{S_TAG}, s{S_TAG}, 1")
    a("s_waitcnt vmcnt(32)")
    ln_compute(a)
    a("s_waitcnt vmcnt(0)")
    wjob_consume(a, L_WT)
    a("s_lshl_b32 s14, s9, 16")
    a("s_lshl_b32 s15, s8, 9")
    a("s_add_u32 s14, s14, s15")
    a(f"s_add_u32 s14, s14, {QP}")
    a("s_lshl_b32 s15, s2, 2")
    a(f"s_add_u32 s15, s15, {FQ}")
    wjob_store(a, 14, 16384, 15)
    mk_srd(a, SRD_W, 24, 4096*1024*2)
    wjob_voff(a, 2048)
    lds_wait(a, L_ISS, 8)
    a(f"s_mul_i32 s11, s8, {128*2048}")
    a("s_lshl_b32 s12, s9, 8")
    a("s_add_u32 s11, s11, s12")
    wjob_issue(a, 2048, 11, L_WT)
    a("s_lshl_b32 s12, s8, 16")
    a(f"s_add_u32 s12, s12, {OREC}")
    a("v_lshlrev_b32 v6, 10, v0")
    a("v_add_u32 v6, 512, v6")
    poll_flags(a, 6, 12, 136, width=4, tagreg_idx=2)
    a("v_mov_b32 v138, v136")
    row_reduce_max(a, 138)
    a("v_sub_f32 v136, v136, v138")
    a("v_exp_f32 v136, v136")
    a("s_nop 0")
    a("v_mul_f32 v137, v136, v137")
    row_reduce_add(a, 137)
    a("v_rcp_f32 v137, v137")
    a("s_nop 0")
    a("v_mul_f32 v136, v136, v137")
    a("v_lshrrev_b32 v2, 4, v0")
    a("v_lshlrev_b32 v2, 14, v2")
    a("v_and_b32 v3, 15, v0")
    a("v_lshl_add_u32 v2, v3, 5, v2")
    for s in range(16):
        a(f"s_add_u32 s5, s12, {s*1024}")
        a(f"buffer_load_dwordx4 {vr(8+8*s)}, v2, {srd(SRD_WS)}, s5 offen sc1")
        a(f"buffer_load_dwordx4 {vr(8+8*s+4)}, v2, {srd(SRD_WS)}, s5 offen offset:16 sc1")
    for s in range(16):
        a(f"v_mov_b32_dpp v{140+s}, v136 row_newbcast:{s} row_mask:0xf bank_mask:0xf")
    a("s_waitcnt vmcnt(0)")
    for e in range(8):
        a(f"v_mul_f32 v{8+e}, v{8+e}, v140")
    for s in range(1, 16):
        for e in range(8):
            a(f"v_fmac_f32 v{8+e}, v{8+8*s+e}, v{140+s}")
    for q in range(4):
        a(f"v_cvt_pk_bf16_f32 v{24+q}, v{8+2*q}, v{9+2*q}")
    af_via_lds(a, 24, L_AF)
    wjob_consume(a, L_WT)
    a("s_lshl_b32 s14, s9, 17")
    a("s_lshl_b32 s12, s8, 11")
    a("s_add_u32 s14, s14, s12")
    a(f"s_add_u32 s14, s14, {SP}")
    a("s_lshl_b32 s12, s9, 6")
    a("s_add_u32 s15, s8, s12")
    a("s_lshl_b32 s15, s15, 2")
    a(f"s_add_u32 s15, s15, {FS}")
    wjob_store(a, 14, 512, 15)
    a("s_endpgm")

    a.label("L_comm")
    a("v_mov_b32 v2, 0")
    a("v_lshlrev_b32 v3, 2, v0")
    a("ds_write_b32 v3, v2")
    a("s_waitcnt lgkmcnt(0)")
    a("s_barrier")
    a(f"s_add_u32 s{S_TAG}, s{S_TAG}, 1")
    a("s_lshr_b32 s8, s2, 4")
    a("s_and_b32 s8, s8, 3")
    a("s_lshr_b32 s9, s2, 6")
    a("s_lshl_b32 s12, s8, 8")
    a(f"s_add_u32 s12, s12, {FQ}")
    a("v_lshlrev_b32 v6, 2, v0")
    poll_flags(a, 6, 12, 7)
    a("s_lshl_b32 s12, s9, 14")
    a("s_lshl_b32 s13, s8, 12")
    a("s_add_u32 s12, s12, s13")
    a(f"s_add_u32 s12, s12, {QP}")
    a("v_lshlrev_b32 v2, 6, v0")
    for sp in range(8):
        a(f"s_add_u32 s5, s12, {sp*65536}")
        for q in range(4):
            a(f"buffer_load_dwordx4 {vr(8+16*sp+4*q)}, v2, {srd(SRD_WS)}, s5 offen offset:{16*q} sc1")
    a("s_waitcnt vmcnt(0)")
    for sp in range(1, 8):
        for e in range(16):
            a(f"v_add_f32 v{8+e}, v{8+e}, v{8+16*sp+e}")
    for q in range(8):
        a(f"v_cvt_pk_bf16_f32 v{24+q}, v{8+2*q}, v{9+2*q}")
    a("v_lshlrev_b32 v2, 5, v0")
    a(f"ds_write_b128 v2, v[24:27] offset:{L_QS}")
    a(f"ds_write_b128 v2, v[28:31] offset:{L_QS+16}")
    lds_inc(a, L_QRDY)
    a("s_cmp_lt_u32 s2, 32")
    a("s_cbranch_scc1 L_final")
    a("s_endpgm")
    a.label("L_final")
    a("s_and_b32 s8, s2, 7")
    a("s_lshr_b32 s9, s2, 3")
    a("s_lshl_b32 s12, s8, 8")
    a(f"s_add_u32 s12, s12, {FS}")
    a("v_lshlrev_b32 v6, 2, v0")
    a("s_mov_b32 s10, -1")
    a("s_mov_b32 s11, 0x0fffffff")
    poll_flags(a, 6, 12, 7, execmask="s[10:11]")
    a("v_and_b32 v3, 31, v0")
    a("v_lshlrev_b32 v4, 3, v3")
    a("s_lshl_b32 s13, s9, 11")
    a("s_lshl_b32 s14, s8, 8")
    a("s_add_u32 s13, s13, s14")
    a(f"buffer_load_dwordx2 v[140:141], v4, {srd(SRD_X)}, s13 offen")
    a("v_lshrrev_b32 v2, 5, v0")
    a("v_lshlrev_b32 v2, 16, v2")
    a("v_lshl_add_u32 v2, v3, 4, v2")
    a("s_lshl_b32 s12, s8, 17")
    a("s_lshl_b32 s14, s9, 9")
    a("s_add_u32 s12, s12, s14")
    a(f"s_add_u32 s12, s12, {SP}")
    for j in range(28, 32):
        for e in range(4):
            a(f"v_mov_b32 v{8+4*j+e}, 0")
    for j in range(32):
        if j == 28:
            a("s_mov_b32 exec_lo, -1"); a("s_mov_b32 exec_hi, 0")
        a(f"s_add_u32 s5, s12, {j*2048}")
        a(f"buffer_load_dwordx4 {vr(8+4*j)}, v2, {srd(SRD_WS)}, s5 offen sc1")
    a("s_mov_b64 exec, -1")
    a("s_waitcnt vmcnt(0)")
    for j in range(1, 32):
        for e in range(4):
            a(f"v_add_f32 v{8+e}, v{8+e}, v{8+4*j+e}")
    for e in range(4):
        a(f"v_mov_b32 v{12+e}, v{8+e}")
    a("s_nop 1")
    for e in range(4):
        a(f"v_permlane32_swap_b32 v{8+e}, v{12+e}")
    a("s_nop 1")
    a(f"s_mov_b32 s14, {f32hex(-1.4426950408889634)}")
    for e in range(4):
        s_, f_, t = 8+e, 12+e, 16+e
        rne(a, s_, s_)
        rne(a, f_, f_)
        a(f"v_mul_f32 v{t}, s14, v{f_}")
        a(f"v_exp_f32 v{t}, v{t}")
        a("s_nop 0")
        a(f"v_add_f32 v{t}, 1.0, v{t}")
        a(f"v_rcp_f32 v{t}, v{t}")
        a("s_nop 0")
        a(f"v_mul_f32 v{t}, v{t}, v{f_}")
        rne(a, t, t)
        a(f"v_mul_f32 v{t}, v{t}, v{s_}")
        rne(a, t, t)
        xr = 140 + e // 2
        if e % 2 == 0:
            a(f"v_lshlrev_b32 v{s_}, 16, v{xr}")
        else:
            a(f"v_and_b32 v{s_}, 0xffff0000, v{xr}")
        a(f"v_add_f32 v{t}, v{t}, v{s_}")
    a("v_cvt_pk_bf16_f32 v20, v16, v17")
    a("v_cvt_pk_bf16_f32 v21, v18, v19")
    a("s_mov_b32 exec_lo, -1"); a("s_mov_b32 exec_hi, 0")
    a(f"buffer_store_dwordx2 v[20:21], v4, {srd(SRD_OUT)}, s13 offen")
    a("s_mov_b64 exec, -1")
    a("s_cmp_lg_u32 s2, 0")
    a("s_cbranch_scc1 L_end")
    a("s_mov_b64 exec, 1")
    a("v_mov_b32 v2, 0")
    a(f"v_mov_b32 v3, s{S_TAG}")
    a(f"buffer_store_dword v3, v2, {srd(SRD_WS)}, 0 offen sc1")
    a.label("L_end")
    a("s_endpgm")

    out += a.l
    out += ['.section .rodata,"a"', ".p2align 6", f".amdhsa_kernel {NAME}",
            "  .amdhsa_next_free_vgpr 168", "  .amdhsa_next_free_sgpr 96", "  .amdhsa_accum_offset 168",
            "  .amdhsa_group_segment_fixed_size 0", "  .amdhsa_kernarg_size 96", "  .amdhsa_user_sgpr_count 2",
            "  .amdhsa_user_sgpr_kernarg_segment_ptr 1", "  .amdhsa_system_sgpr_workgroup_id_x 1",
            ".end_amdhsa_kernel"]
    open(path, "w").write("\n".join(out) + "\n")

def wjob_consume_dyn(a):
    def rd(tb, T):
        for i in range(8):
            a(f"ds_read_b128 {vr(T+4*i)}, v3 offset:{(tb*8+i)*1024}")
    rd(0, W_T0)
    for tb in range(4):
        T = W_T0 if tb % 2 == 0 else W_T1
        if tb < 3:
            rd(tb+1, W_T1 if tb % 2 == 0 else W_T0)
            a("s_waitcnt lgkmcnt(8)")
        else:
            a("s_waitcnt lgkmcnt(0)")
        for w in range(4):
            TB = W_TB + 8*(w % 2)
            for p in range(4):
                a(f"v_perm_b32 v{TB+p}, v{T+4*(2*p+1)+w}, v{T+4*(2*p)+w}, s{S_SELLO}")
            for p in range(4):
                a(f"v_perm_b32 v{TB+4+p}, v{T+4*(2*p+1)+w}, v{T+4*(2*p)+w}, s{S_SELHI}")
            a("s_nop 1")
            for h in range(2):
                t = 2*w + h
                c = "0" if tb == 0 else vr(W_ACC+4*t)
                a(f"v_mfma_f32_16x16x32_bf16 {vr(W_ACC+4*t)}, {vr(W_AF+4*tb)}, {vr(TB+4*h)}, {c}")

if __name__ == "__main__":
    depth = int(sys.argv[2]) if len(sys.argv) > 2 else 8
    gen(sys.argv[1], depth)
```

```python
import struct, sys

NAME = "recurrent_scan__gqa_block_cached__glu_gated_geglu__decode_kernel"

def f32hex(x):
    return "0x%08x" % struct.unpack("<I", struct.pack("<f", x))[0]

EPOCH = 0
FQ = 0x1000
FGU = 0x2000
FS = 0x3000
QP = 0x100000
GUP = 0x200000
OREC = 0x400000
SP = 0x800000

L_QRDY = 0
L_OCNT = 4
L_ISS = 8
L_ML = 0x100
L_QS = 0x400
L_AF = 0xC00
L_OP = 0x2000
L_WT = 0xA000
LDS_BYTES = 0xA000 + 3 * 0x8000

S_TAG = 40
S_TMO = 41
SRD_K, SRD_V, SRD_W, SRD_WS, SRD_X, SRD_OUT = 44, 48, 52, 56, 60, 64
S_SELLO, S_SELHI, S_SCALE, S_LOG2E = 68, 69, 70, 71

class A:
    def __init__(self):
        self.l = []
        self.n = 0
    def __call__(self, s):
        self.l.append("    " + s)
    def label(self, s):
        self.l.append(s + ":")
    def uniq(self, p):
        self.n += 1
        return f"L_{p}_{self.n}"

def vr(b, n=4):
    return f"v[{b}:{b+n-1}]"

def srd(b):
    return f"s[{b}:{b+3}]"

def mk_srd(a, d, ptr, nbytes):
    a(f"s_mov_b32 s{d}, s{ptr}")
    a(f"s_mov_b32 s{d+1}, s{ptr+1}")
    a(f"s_mov_b32 s{d+2}, {nbytes}")
    a(f"s_mov_b32 s{d+3}, 0x00020000")

def lds_wait(a, addr, n, vtmp=2, vz=3):
    lp = a.uniq("lw"); dn = a.uniq("lwd")
    a(f"s_mov_b32 s{S_TMO}, 400000")
    a(f"v_mov_b32 v{vz}, 0")
    a.label(lp)
    a(f"ds_read_b32 v{vtmp}, v{vz} offset:{addr}")
    a("s_waitcnt lgkmcnt(0)")
    a(f"v_readfirstlane_b32 s4, v{vtmp}")
    a("s_nop 3")
    a(f"s_cmp_ge_u32 s4, {n}")
    a(f"s_cbranch_scc1 {dn}")
    a("s_sleep 1")
    a(f"s_sub_u32 s{S_TMO}, s{S_TMO}, 1")
    a(f"s_cmp_lg_u32 s{S_TMO}, 0")
    a(f"s_cbranch_scc1 {lp}")
    a.label(dn)

def lds_inc(a, addr, v1=2, v2=3):
    a("s_mov_b64 exec, 1")
    a(f"v_mov_b32 v{v1}, 0")
    a(f"v_mov_b32 v{v2}, 1")
    a(f"ds_add_u32 v{v1}, v{v2} offset:{addr}")
    a("s_mov_b64 exec, -1")

def poll_flags(a, voff, soff_reg, vdst, width=1, tagreg_idx=0, execmask=None):
    lp = a.uniq("pl"); dn = a.uniq("pld")
    if NOSYNC:
        a("s_waitcnt vmcnt(0)")
        return
    a(f"s_mov_b32 s{S_TMO}, 100000")
    if execmask is not None:
        a(f"s_mov_b64 exec, {execmask}")
    a.label(lp)
    if width == 1:
        a(f"buffer_load_dword v{vdst}, v{voff}, {srd(SRD_WS)}, s{soff_reg} offen sc1")
    else:
        a(f"buffer_load_dwordx4 {vr(vdst)}, v{voff}, {srd(SRD_WS)}, s{soff_reg} offen sc1")
    a("s_waitcnt vmcnt(0)")
    a(f"v_cmp_ne_u32 vcc, s{S_TAG}, v{vdst+tagreg_idx}")
    a("s_nop 3")
    a("s_cmp_eq_u64 vcc, 0")
    a(f"s_cbranch_scc1 {dn}")
    a(f"s_sleep {PSLEEP}")
    a(f"s_sub_u32 s{S_TMO}, s{S_TMO}, 1")
    a(f"s_cmp_lg_u32 s{S_TMO}, 0")
    a(f"s_cbranch_scc1 {lp}")
    a.label(dn)
    if execmask is not None:
        a("s_mov_b64 exec, -1")

STAMPS = False
WPACE = 64
NOSYNC = 0
PSLEEP = 2
QPACE = 64
TPACE = 64
STAMP_BASE = 0xF00000
def stamp(a, idx):
    if not STAMPS: return
    a("s_memrealtime s[90:91]")
    a("s_waitcnt lgkmcnt(0)")
    a(f"s_mov_b32 s{72+idx}, s90")

def stamp_flush(a):
    if not STAMPS: return
    a("s_mov_b64 exec, 1")
    a("s_lshl_b32 s92, s2, 10")
    a("s_lshl_b32 s93, s3, 6")
    a("s_add_u32 s92, s92, s93")
    a(f"s_add_u32 s92, s92, {STAMP_BASE}")
    a("v_mov_b32 v1, 0")
    for q in range(4):
        for e in range(4):
            a(f"v_mov_b32 v{8+4*q+e}, s{72+4*q+e}")
        a(f"buffer_store_dwordx4 v[{8+4*q}:{11+4*q}], v1, {srd(SRD_WS)}, s92 offen offset:{16*q}")

def rne(a, dst, src):
    a(f"v_cvt_pk_bf16_f32 v{dst}, v{src}, v{src}")
    a(f"v_lshlrev_b32 v{dst}, 16, v{dst}")

def row_reduce_add(a, v):
    for r in (8, 4, 2, 1):
        a("s_nop 1")
        a(f"v_add_f32_dpp v{v}, v{v}, v{v} row_ror:{r} row_mask:0xf bank_mask:0xf")

def row_reduce_max(a, v):
    for r in (8, 4, 2, 1):
        a("s_nop 1")
        a(f"v_max_f32_dpp v{v}, v{v}, v{v} row_ror:{r} row_mask:0xf bank_mask:0xf")

def xg_reduce(a, v, t, op):
    a(f"v_mov_b32 v{t}, v{v}")
    a("s_nop 1")
    a(f"v_permlane32_swap_b32 v{v}, v{t}")
    a("s_nop 1")
    a(f"{op} v{v}, v{v}, v{t}")
    a(f"v_mov_b32 v{t}, v{v}")
    a("s_nop 1")
    a(f"v_permlane16_swap_b32 v{v}, v{t}")
    a("s_nop 1")
    a(f"{op} v{v}, v{v}, v{t}")

W_T0, W_T1, W_ACC, W_TB, W_AF, W_M2 = 8, 40, 72, 104, 120, 136

def wjob_issue(a, rs, s_base, lds_slot, pace=64, barrier=False, dyn=None, mid=None):
    n = 0
    done = False
    for tb in range(4):
        for i in range(8):
            if n == pace:
                if barrier:
                    a("s_waitcnt lgkmcnt(0)")
                    a("s_barrier")
                    done = True
                if mid: mid()
            if n >= pace:
                a(f"s_waitcnt vmcnt({pace-1})")
            a(f"s_add_u32 s5, s{s_base}, {(32*tb+i)*rs}")
            if dyn is None:
                a(f"s_mov_b32 m0, {lds_slot + (tb*8+i)*1024}")
            else:
                a(f"s_add_u32 s14, s{dyn}, {(tb*8+i)*1024}")
                a("s_mov_b32 m0, s14")
            a("s_nop 0")
            a(f"buffer_load_dwordx4 v1, {srd(SRD_W)}, s5 offen nt lds")
            n += 1
    if barrier and not done:
        a("s_waitcnt lgkmcnt(0)")
        a("s_barrier")
        if mid: mid()

def wjob_voff(a, rs):
    a("v_lshrrev_b32 v2, 4, v0")
    a(f"s_mov_b32 s5, {8*rs}")
    a("v_mul_lo_u32 v2, v2, s5")
    a("v_and_b32 v1, 15, v0")
    a("v_lshlrev_b32 v1, 4, v1")
    a("v_add_u32 v1, v1, v2")

def wjob_consume(a, lds_slot):
    a("v_lshlrev_b32 v2, 4, v0")
    def rd(tb, T):
        for i in range(8):
            off = lds_slot + (tb*8+i)*1024
            a(f"ds_read_b128 {vr(T+4*i)}, v3 offset:{(tb*8+i)*1024}")
    a(f"v_add_u32 v3, {lds_slot}, v2")
    rd(0, W_T0)
    for tb in range(4):
        T = W_T0 if tb % 2 == 0 else W_T1
        if tb < 3:
            rd(tb+1, W_T1 if tb % 2 == 0 else W_T0)
            a("s_waitcnt lgkmcnt(8)")
        else:
            a("s_waitcnt lgkmcnt(0)")
        for w in range(4):
            TB = W_TB + 8*(w % 2)
            for p in range(4):
                a(f"v_perm_b32 v{TB+p}, v{T+4*(2*p+1)+w}, v{T+4*(2*p)+w}, s{S_SELLO}")
            for p in range(4):
                a(f"v_perm_b32 v{TB+4+p}, v{T+4*(2*p+1)+w}, v{T+4*(2*p)+w}, s{S_SELHI}")
            a("s_nop 1")
            for h in range(2):
                t = 2*w + h
                c = "0" if tb == 0 else vr(W_ACC+4*t)
                a(f"v_mfma_f32_16x16x32_bf16 {vr(W_ACC+4*t)}, {vr(W_AF+4*tb)}, {vr(TB+4*h)}, {c}")

def wjob_store(a, s_out, mstride, s_flag):
    a("s_nop 7")
    a("s_nop 1")
    R = W_T0
    for m in range(4):
        for t in range(8):
            a(f"v_mov_b32 v{R+8*m+t}, v{W_ACC+4*t+m}")
    a("v_lshlrev_b32 v2, 5, v0")
    a("s_mov_b64 exec, 0xffff")
    for m in range(4):
        a(f"s_add_u32 s5, s{s_out}, {m*mstride}")
        a(f"buffer_store_dwordx4 {vr(R+8*m)}, v2, {srd(SRD_WS)}, s5 offen sc1")
        a(f"buffer_store_dwordx4 {vr(R+8*m+4)}, v2, {srd(SRD_WS)}, s5 offen offset:16 sc1")
    a("s_waitcnt vmcnt(0)")
    a("s_mov_b64 exec, 1")
    a("v_mov_b32 v2, 0")
    a(f"v_mov_b32 v3, s{S_TAG}")
    a(f"buffer_store_dword v3, v2, {srd(SRD_WS)}, s{s_flag} offen sc1")
    a("s_mov_b64 exec, -1")

def ln_issue(a, s_r0x2):
    a("v_lshrrev_b32 v2, 4, v0")
    a("v_lshlrev_b32 v2, 11, v2")
    a("v_and_b32 v3, 15, v0")
    a("v_lshlrev_b32 v3, 7, v3")
    a("v_add_u32 v2, v2, v3")
    for k in range(8):
        a(f"buffer_load_dwordx4 {vr(W_T0+4*k)}, v2, {srd(SRD_X)}, 0 offen offset:{16*k}")
    a("v_and_b32 v3, 3, v0")
    a("v_lshlrev_b32 v3, 11, v3")
    a("v_lshrrev_b32 v4, 4, v0")
    a("v_lshlrev_b32 v4, 4, v4")
    a("v_add_u32 v3, v3, v4")
    for tb in range(4):
        a(f"buffer_load_dwordx4 {vr(W_AF+4*tb)}, v3, {srd(SRD_X)}, s{s_r0x2} offen offset:{64*tb}")

def ln_compute(a):
    X = W_T0
    a("v_mov_b32 v2, 0")
    a("v_mov_b32 v3, 0")
    for r in range(32):
        a(f"v_lshlrev_b32 v4, 16, v{X+r}")
        a(f"v_and_b32 v5, 0xffff0000, v{X+r}")
        a("v_add_f32 v2, v2, v4")
        a("v_add_f32 v3, v3, v5")
    a("v_add_f32 v2, v2, v3")
    row_reduce_add(a, 2)
    a(f"v_mul_f32 v2, {f32hex(1.0/1024)}, v2")
    a("v_mov_b32 v3, 0")
    a("v_mov_b32 v6, 0")
    for r in range(32):
        a(f"v_lshlrev_b32 v4, 16, v{X+r}")
        a(f"v_and_b32 v5, 0xffff0000, v{X+r}")
        a("v_sub_f32 v4, v4, v2")
        a("v_sub_f32 v5, v5, v2")
        a("v_fmac_f32 v3, v4, v4")
        a("v_fmac_f32 v6, v5, v5")
    a("v_add_f32 v3, v3, v6")
    row_reduce_add(a, 3)
    a(f"v_mul_f32 v3, {f32hex(1.0/1024)}, v3")
    rne(a, 2, 2)
    rne(a, 3, 3)
    a(f"v_add_f32 v3, {f32hex(1e-5)}, v3")
    rne(a, 3, 3)
    a("v_sqrt_f32 v3, v3")
    a("s_nop 0")
    rne(a, 3, 3)
    a("v_and_b32 v4, 3, v0")
    a("v_lshlrev_b32 v4, 6, v4")
    a("ds_bpermute_b32 v2, v4, v2")
    a("ds_bpermute_b32 v3, v4, v3")
    a("s_waitcnt lgkmcnt(0)")
    a("v_rcp_f32 v4, v3")
    a("s_nop 0")
    for r in range(16):
        R = W_AF + r
        a(f"v_lshlrev_b32 v5, 16, v{R}")
        a(f"v_and_b32 v6, 0xffff0000, v{R}")
        a("v_sub_f32 v5, v5, v2")
        a("v_sub_f32 v6, v6, v2")
        a("v_cvt_pk_bf16_f32 v7, v5, v6")
        a("v_lshlrev_b32 v5, 16, v7")
        a("v_and_b32 v6, 0xffff0000, v7")
        a(f"v_mul_f32 v{W_M2}, v5, v4")
        a(f"v_mul_f32 v{W_M2+1}, v6, v4")
        a(f"v_fma_f32 v5, -v{W_M2}, v3, v5")
        a(f"v_fma_f32 v6, -v{W_M2+1}, v3, v6")
        a(f"v_fma_f32 v{W_M2}, v5, v4, v{W_M2}")
        a(f"v_fma_f32 v{W_M2+1}, v6, v4, v{W_M2+1}")
        a(f"v_cvt_pk_bf16_f32 v{R}, v{W_M2}, v{W_M2+1}")

def af_via_lds(a, vpk, lds_af):
    a("v_lshlrev_b32 v2, 4, v0")
    a(f"ds_write_b128 v2, {vr(vpk)} offset:{lds_af}")
    a("v_and_b32 v2, 3, v0")
    a("v_lshlrev_b32 v2, 8, v2")
    a("v_lshrrev_b32 v3, 4, v0")
    a("v_lshlrev_b32 v3, 4, v3")
    a("v_add_u32 v2, v2, v3")
    a("s_waitcnt lgkmcnt(0)")
    for tb in range(4):
        a(f"ds_read_b128 {vr(W_AF+4*tb)}, v2 offset:{lds_af + 64*tb}")
    a("s_waitcnt lgkmcnt(0)")

def gen(path, depth=8):
    a = A()
    hdr = open("recurrent_scan__gqa_block_cached__glu_gated_geglu__decode.s.ref").read().split("\n")
    top = [l for l in hdr if l.startswith(";") and "@launch" not in l]
    out = top + [f"; @launch grid=(256,1,1) block=(768,1,1) lds={LDS_BYTES}"]
    out += ['.amdgcn_target "amdgcn-amd-amdhsa--gfx950"', ".text", f".globl {NAME}", ".p2align 8",
            f".type {NAME},@function", f"{NAME}:"]
    a("s_cmp_ge_u32 s2, 256")
    a("s_cbranch_scc1 L_end")
    a("s_load_dwordx16 s[16:31], s[0:1], 0")
    a("s_load_dwordx8 s[32:39], s[0:1], 64")
    a("v_lshrrev_b32 v1, 6, v0")
    a("v_and_b32 v0, 63, v0")
    a("s_nop 0")
    a("v_readfirstlane_b32 s3, v1")
    a(f"s_mov_b32 s{S_SELLO}, 0x05040100")
    a(f"s_mov_b32 s{S_SELHI}, 0x07060302")
    a(f"s_mov_b32 s{S_SCALE}, {f32hex(128 ** -0.5)}")
    a(f"s_mov_b32 s{S_LOG2E}, {f32hex(1.4426950408889634)}")
    a("s_waitcnt lgkmcnt(0)")
    a(f"s_load_dword s{S_TAG}, s[38:39], {EPOCH}")
    mk_srd(a, SRD_K, 18, 0x2000000)
    mk_srd(a, SRD_V, 20, 0x2000000)
    mk_srd(a, SRD_WS, 38, 0x10000000)
    mk_srd(a, SRD_X, 16, 8192)
    mk_srd(a, SRD_OUT, 34, 8192)
    if STAMPS:
        for i in range(16): a(f"s_mov_b32 s{72+i}, 0")
    stamp(a, 0)
    a("s_cmp_ge_u32 s3, 8")
    a("s_cbranch_scc1 L_notattn")

    K0, V0, Q0, S0 = 8, 72, 136, 152
    a("s_lshl_b32 s6, s2, 17")
    a("s_lshl_b32 s5, s3, 14")
    a("s_add_u32 s6, s6, s5")
    a("v_and_b32 v2, 15, v0")
    a("v_lshrrev_b32 v3, 4, v0")
    a("v_lshlrev_b32 v4, 8, v2")
    a("v_lshl_add_u32 v4, v3, 4, v4")
    a("v_lshlrev_b32 v5, 10, v3")
    a("v_lshl_add_u32 v5, v2, 4, v5")
    loads = []
    for kt in range(4):
        for c in range(4):
            loads.append((SRD_K, 4, K0+16*kt+4*c, kt*4096, c*64))
    for u in range(2):
        for i in range(8):
            loads.append((SRD_V, 5, V0+32*u+4*i, u*8192+(i >> 2)*4096, (i & 3)*256))
    for n, (sr, vo, dst, so, io) in enumerate(loads):
        if n == depth:
            a("s_waitcnt lgkmcnt(0)")
            a("s_barrier")
        if n >= depth:
            a(f"s_waitcnt vmcnt({depth-1})")
        a(f"s_add_u32 s7, s6, {so}")
        a(f"buffer_load_dwordx4 {vr(dst)}, v{vo}, {srd(sr)}, s7 offen offset:{io} nt")
    if depth >= len(loads):
        a("s_waitcnt lgkmcnt(0)")
        a("s_barrier")
    a(f"s_add_u32 s{S_TAG}, s{S_TAG}, 1")
    stamp(a, 1)
    lds_inc(a, L_ISS)
    lds_wait(a, L_QRDY, 1)
    stamp(a, 2)
    a("v_and_b32 v2, 7, v0")
    a("v_lshlrev_b32 v2, 8, v2")
    a("v_lshrrev_b32 v3, 4, v0")
    a("v_lshl_add_u32 v2, v3, 4, v2")
    for c in range(4):
        a(f"ds_read_b128 {vr(Q0+4*c)}, v2 offset:{L_QS + 64*c}")
    a("s_waitcnt vmcnt(16) lgkmcnt(0)")
    stamp(a, 3)
    for kt in range(4):
        for c in range(4):
            cc = "0" if c == 0 else vr(S0+4*kt)
            a(f"v_mfma_f32_16x16x32_bf16 {vr(S0+4*kt)}, {vr(K0+16*kt+4*c)}, {vr(Q0+4*c)}, {cc}")
    a("s_nop 7")
    a("s_nop 1")
    for p in range(8):
        x, y = S0+2*p, S0+2*p+1
        a(f"v_cvt_pk_bf16_f32 v2, v{x}, v{y}")
        a(f"v_lshlrev_b32 v{x}, 16, v2")
        a(f"v_and_b32 v{y}, 0xffff0000, v2")
        a(f"v_mul_f32 v{x}, s{S_SCALE}, v{x}")
        a(f"v_mul_f32 v{y}, s{S_SCALE}, v{y}")
        a(f"v_cvt_pk_bf16_f32 v2, v{x}, v{y}")
        a(f"v_lshlrev_b32 v{x}, 16, v2")
        a(f"v_and_b32 v{y}, 0xffff0000, v2")
    a(f"v_max3_f32 v6, v{S0}, v{S0+1}, v{S0+2}")
    for i in range(3, 15, 2):
        a(f"v_max3_f32 v6, v6, v{S0+i}, v{S0+i+1}")
    a(f"v_max_f32 v6, v6, v{S0+15}")
    xg_reduce(a, 6, 7, "v_max_f32")
    a(f"v_mul_f32 v6, s{S_LOG2E}, v6")
    for i in range(16):
        a(f"v_fma_f32 v{S0+i}, v{S0+i}, s{S_LOG2E}, -v6")
    for i in range(16):
        a(f"v_exp_f32 v{S0+i}, v{S0+i}")
    a("s_nop 0")
    a(f"v_add_f32 v7, v{S0}, v{S0+1}")
    for i in range(2, 16):
        a(f"v_add_f32 v7, v7, v{S0+i}")
    xg_reduce(a, 7, 2, "v_add_f32")
    P0 = 56
    for u in range(2):
        for q in range(4):
            a(f"v_cvt_pk_bf16_f32 v{P0+4*u+q}, v{S0+8*u+2*q}, v{S0+8*u+2*q+1}")
    stamp(a, 4)
    O0, TB0 = 8, 40
    for u in range(2):
        a(f"s_waitcnt vmcnt({8 if u == 0 else 0})")
        for w in range(4):
            TB = TB0 + 8*(w % 2)
            for p in range(4):
                a(f"v_perm_b32 v{TB+p}, v{V0+32*u+4*(2*p+1)+w}, v{V0+32*u+4*(2*p)+w}, s{S_SELLO}")
            for p in range(4):
                a(f"v_perm_b32 v{TB+4+p}, v{V0+32*u+4*(2*p+1)+w}, v{V0+32*u+4*(2*p)+w}, s{S_SELHI}")
            a("s_nop 1")
            for h in range(2):
                t = 2*w+h
                cc = "0" if u == 0 else vr(O0+4*t)
                a(f"v_mfma_f32_16x16x32_bf16 {vr(O0+4*t)}, {vr(P0+4*u)}, {vr(TB+4*h)}, {cc}")
    a("s_nop 7")
    a("s_nop 1")
    R0 = 72
    for r in range(4):
        for t in range(8):
            a(f"v_mov_b32 v{R0+8*r+t}, v{O0+4*t+r}")
    a("v_lshrrev_b32 v2, 4, v0")
    a("v_lshlrev_b32 v2, 11, v2")
    a("v_and_b32 v3, 15, v0")
    a("v_lshl_add_u32 v2, v3, 5, v2")
    a("s_lshl_b32 s5, s3, 12")
    a("v_add_u32 v2, s5, v2")
    a("s_mov_b32 exec_lo, -1"); a("s_mov_b32 exec_hi, 0")
    for r in range(4):
        a(f"ds_write_b128 v2, {vr(R0+8*r)} offset:{L_OP + r*512}")
        a(f"ds_write_b128 v2, {vr(R0+8*r+4)} offset:{L_OP + r*512 + 16}")
    a("s_mov_b64 exec, -1")
    a("v_and_b32 v2, 7, v0")
    a("v_lshlrev_b32 v2, 3, v2")
    a("s_lshl_b32 s5, s3, 6")
    a("v_add_u32 v2, s5, v2")
    a(f"ds_write_b64 v2, v[6:7] offset:{L_ML}")
    stamp(a, 5)
    lds_inc(a, L_OCNT)
    lds_wait(a, L_OCNT, 8)
    stamp(a, 6)
    a("s_lshl_b32 s5, s3, 3")
    a("v_mov_b32 v2, s5")
    for w in range(8):
        a(f"ds_read_b64 v[{8+2*w}:{9+2*w}], v2 offset:{L_ML + w*64}")
    a("s_lshl_b32 s5, s3, 9")
    a("v_lshlrev_b32 v3, 3, v0")
    a("v_add_u32 v3, s5, v3")
    for w in range(8):
        a(f"ds_read_b64 v[{24+2*w}:{25+2*w}], v3 offset:{L_OP + w*4096}")
    a("s_waitcnt lgkmcnt(0)")
    a("v_max3_f32 v4, v8, v10, v12")
    a("v_max3_f32 v4, v4, v14, v16")
    a("v_max3_f32 v4, v4, v18, v20")
    a("v_max_f32 v4, v4, v22")
    for w in range(8):
        a(f"v_sub_f32 v{8+2*w}, v{8+2*w}, v4")
    for w in range(8):
        a(f"v_exp_f32 v{8+2*w}, v{8+2*w}")
    a("s_nop 0")
    a("v_mul_f32 v5, v8, v9")
    a("v_mul_f32 v40, v8, v24")
    a("v_mul_f32 v41, v8, v25")
    for w in range(1, 8):
        a(f"v_fmac_f32 v5, v{8+2*w}, v{9+2*w}")
        a(f"v_fmac_f32 v40, v{8+2*w}, v{24+2*w}")
        a(f"v_fmac_f32 v41, v{8+2*w}, v{25+2*w}")
    a("s_lshr_b32 s5, s2, 4")
    a("s_and_b32 s5, s5, 3")
    a("s_lshl_b32 s5, s5, 3")
    a("s_add_u32 s5, s5, s3")
    a("s_lshl_b32 s5, s5, 2")
    a("s_lshr_b32 s6, s2, 6")
    a("s_add_u32 s5, s5, s6")
    a("s_lshl_b32 s5, s5, 4")
    a("s_and_b32 s6, s2, 15")
    a("s_add_u32 s5, s5, s6")
    a("s_lshl_b32 s5, s5, 10")
    a(f"s_add_u32 s5, s5, {OREC}")
    a("v_lshlrev_b32 v3, 3, v0")
    a(f"buffer_store_dwordx2 v[40:41], v3, {srd(SRD_WS)}, s5 offen sc1")
    a(f"v_mov_b32 v6, s{S_TAG}")
    a(f"v_mov_b32 v7, s{S_TAG}")
    a("v_mov_b32 v3, 0")
    a("s_waitcnt vmcnt(0)")
    a("s_mov_b64 exec, 1")
    a(f"buffer_store_dwordx4 v[4:7], v3, {srd(SRD_WS)}, s5 offen offset:512 sc1")
    stamp(a, 7)
    stamp_flush(a)
    a("s_endpgm")

    a.label("L_notattn")
    a("s_cmp_eq_u32 s3, 11")
    a("s_cbranch_scc1 L_comm")
    a("s_cmp_eq_u32 s3, 8")
    a("s_cbranch_scc1 L_w8")
    a("s_cmp_lt_u32 s2, 224")
    a("s_cbranch_scc1 L_ffn")
    a("s_waitcnt lgkmcnt(0)")
    a("s_barrier")
    a("s_endpgm")
    a.label("L_ffn")
    a("s_cmp_eq_u32 s3, 9")
    a("s_cselect_b32 s52, s28, s30")
    a("s_cselect_b32 s53, s29, s31")
    a(f"s_mov_b32 s54, {1024*3584*2}")
    a("s_mov_b32 s55, 0x00020000")
    a("s_lshr_b32 s8, s2, 3")
    a("s_and_b32 s9, s2, 7")
    a("s_lshl_b32 s10, s9, 8")
    ln_issue(a, 10)
    wjob_voff(a, 7168)
    a(f"s_mul_i32 s11, s9, {128*7168}")
    a("s_lshl_b32 s12, s8, 8")
    a("s_add_u32 s11, s11, s12")
    a("s_sub_u32 s13, s3, 8")
    a("s_lshl_b32 s13, s13, 15")
    a(f"s_add_u32 s13, s13, {L_WT}")
    def mid_ffn():
        a(f"s_add_u32 s{S_TAG}, s{S_TAG}, 1")
        a(f"s_waitcnt vmcnt({min(WPACE,32)})")
        stamp(a, 1)
        a("v_mov_b32 v160, v1")
        ln_compute(a)
        a("v_mov_b32 v1, v160")
        stamp(a, 2)
    wjob_issue(a, 7168, 11, None, pace=WPACE, barrier=True, dyn=13, mid=mid_ffn)
    a("s_waitcnt vmcnt(0)")
    a("v_lshlrev_b32 v2, 4, v0")
    a("v_add_u32 v3, s13, v2")
    stamp(a, 3)
    wjob_consume_dyn(a)
    a("s_sub_u32 s12, s3, 9")
    a("s_mul_i32 s14, s12, 458752")
    a("s_mul_i32 s15, s9, 57344")
    a("s_add_u32 s14, s14, s15")
    a("s_lshl_b32 s15, s8, 9")
    a("s_add_u32 s14, s14, s15")
    a(f"s_add_u32 s14, s14, {GUP}")
    a("s_lshl_b32 s15, s8, 4")
    a("s_lshl_b32 s12, s12, 3")
    a("s_add_u32 s15, s15, s12")
    a("s_add_u32 s15, s15, s9")
    a("s_lshl_b32 s15, s15, 2")
    a(f"s_add_u32 s15, s15, {FGU}")
    wjob_store(a, 14, 14336, 15)
    stamp(a, 4)
    a("s_cmp_eq_u32 s3, 9")
    a("s_cbranch_scc1 L_down")
    stamp_flush(a)
    a("s_endpgm")

    a.label("L_down")
    mk_srd(a, SRD_W, 32, 3584*1024*2)
    wjob_voff(a, 2048)
    lds_wait(a, L_ISS, 8)
    a(f"s_mul_i32 s11, s8, {128*2048}")
    a("s_lshl_b32 s12, s9, 8")
    a("s_add_u32 s11, s11, s12")
    wjob_issue(a, 2048, 11, L_WT + 0x8000, pace=TPACE)
    a("s_lshl_b32 s12, s8, 6")
    a(f"s_add_u32 s12, s12, {FGU}")
    a("v_lshlrev_b32 v6, 2, v0")
    poll_flags(a, 6, 12, 7, execmask="0xffff")
    stamp(a, 5)
    a("v_lshrrev_b32 v2, 4, v0")
    a("v_mul_u32_u24 v2, 14336, v2")
    a("v_and_b32 v3, 15, v0")
    a("v_lshl_add_u32 v2, v3, 5, v2")
    a("s_lshl_b32 s12, s8, 9")
    a(f"s_add_u32 s12, s12, {GUP}")
    G = 8
    for mat in range(2):
        for sp in range(8):
            a(f"s_add_u32 s5, s12, {mat*458752 + sp*57344}")
            a(f"buffer_load_dwordx4 {vr(G+64*mat+8*sp)}, v2, {srd(SRD_WS)}, s5 offen sc1")
            a(f"buffer_load_dwordx4 {vr(G+64*mat+8*sp+4)}, v2, {srd(SRD_WS)}, s5 offen offset:16 sc1")
    a("s_waitcnt vmcnt(0)")
    for mat in range(2):
        for sp in range(1, 8):
            for e in range(8):
                a(f"v_add_f32 v{G+64*mat+e}, v{G+64*mat+e}, v{G+64*mat+8*sp+e}")
    c1 = 0.044715
    c2 = -2.0 * 0.7978845608028654 * 1.4426950408889634
    a(f"s_mov_b32 s12, {f32hex(c1)}")
    a(f"s_mov_b32 s13, {f32hex(c2)}")
    for e in range(8):
        g, u, t = G+e, G+64+e, 16+e
        rne(a, g, g)
        rne(a, u, u)
        a(f"v_mul_f32 v{t}, v{g}, v{g}")
        a(f"v_mul_f32 v{t}, v{t}, v{g}")
        a(f"v_fma_f32 v{t}, v{t}, s12, v{g}")
        a(f"v_mul_f32 v{t}, s13, v{t}")
        a(f"v_exp_f32 v{t}, v{t}")
        a("s_nop 0")
        a(f"v_add_f32 v{t}, 1.0, v{t}")
        a(f"v_rcp_f32 v{t}, v{t}")
        a("s_nop 0")
        a(f"v_mul_f32 v{t}, v{t}, v{g}")
        rne(a, t, t)
        a(f"v_mul_f32 v{t}, v{t}, v{u}")
    for q in range(4):
        a(f"v_cvt_pk_bf16_f32 v{24+q}, v{16+2*q}, v{17+2*q}")
    stamp(a, 6)
    af_via_lds(a, 24, L_AF + 1024)
    wjob_consume(a, L_WT + 0x8000)
    a("s_lshl_b32 s14, s9, 17")
    a("s_add_u32 s15, s8, 32")
    a("s_lshl_b32 s12, s15, 11")
    a("s_add_u32 s14, s14, s12")
    a(f"s_add_u32 s14, s14, {SP}")
    a("s_lshl_b32 s12, s9, 6")
    a("s_add_u32 s15, s15, s12")
    a("s_lshl_b32 s15, s15, 2")
    a(f"s_add_u32 s15, s15, {FS}")
    wjob_store(a, 14, 512, 15)
    stamp(a, 7)
    stamp_flush(a)
    a("s_endpgm")

    a.label("L_w8")
    mk_srd(a, SRD_W, 22, 1024*4096*2)
    a("s_lshr_b32 s8, s2, 3")
    a("s_and_b32 s9, s2, 7")
    a("s_lshl_b32 s10, s9, 8")
    ln_issue(a, 10)
    wjob_voff(a, 8192)
    a(f"s_mul_i32 s11, s9, {128*8192}")
    a("s_lshl_b32 s12, s8, 8")
    a("s_add_u32 s11, s11, s12")
    def mid_q():
        a(f"s_add_u32 s{S_TAG}, s{S_TAG}, 1")
        a(f"s_waitcnt vmcnt({min(QPACE,32)})")
        stamp(a, 1)
        ln_compute(a)
        stamp(a, 2)
    wjob_issue(a, 8192, 11, L_WT, pace=QPACE, barrier=True, mid=mid_q)
    a("s_waitcnt vmcnt(0)")
    stamp(a, 3)
    wjob_consume(a, L_WT)
    a("s_lshl_b32 s14, s9, 16")
    a("s_lshl_b32 s15, s8, 9")
    a("s_add_u32 s14, s14, s15")
    a(f"s_add_u32 s14, s14, {QP}")
    a("s_lshl_b32 s15, s2, 2")
    a(f"s_add_u32 s15, s15, {FQ}")
    wjob_store(a, 14, 16384, 15)
    stamp(a, 4)
    mk_srd(a, SRD_W, 24, 4096*1024*2)
    wjob_voff(a, 2048)
    lds_wait(a, L_ISS, 8)
    a(f"s_mul_i32 s11, s8, {128*2048}")
    a("s_lshl_b32 s12, s9, 8")
    a("s_add_u32 s11, s11, s12")
    wjob_issue(a, 2048, 11, L_WT, pace=TPACE)
    a("s_lshl_b32 s12, s8, 16")
    a(f"s_add_u32 s12, s12, {OREC}")
    a("v_lshlrev_b32 v6, 10, v0")
    a("v_add_u32 v6, 512, v6")
    lds_wait(a, L_OCNT, 8)
    poll_flags(a, 6, 12, 136, width=4, tagreg_idx=2)
    stamp(a, 5)
    a("v_mov_b32 v138, v136")
    row_reduce_max(a, 138)
    a("v_sub_f32 v136, v136, v138")
    a("v_exp_f32 v136, v136")
    a("s_nop 0")
    a("v_mul_f32 v137, v136, v137")
    row_reduce_add(a, 137)
    a("v_rcp_f32 v137, v137")
    a("s_nop 0")
    a("v_mul_f32 v136, v136, v137")
    a("v_lshrrev_b32 v2, 4, v0")
    a("v_lshlrev_b32 v2, 14, v2")
    a("v_and_b32 v3, 15, v0")
    a("v_lshl_add_u32 v2, v3, 5, v2")
    for s in range(16):
        a(f"s_add_u32 s5, s12, {s*1024}")
        a(f"buffer_load_dwordx4 {vr(8+8*s)}, v2, {srd(SRD_WS)}, s5 offen sc1")
        a(f"buffer_load_dwordx4 {vr(8+8*s+4)}, v2, {srd(SRD_WS)}, s5 offen offset:16 sc1")
    for s in range(16):
        a(f"v_mov_b32_dpp v{140+s}, v136 row_newbcast:{s} row_mask:0xf bank_mask:0xf")
    a("s_waitcnt vmcnt(0)")
    for e in range(8):
        a(f"v_mul_f32 v{8+e}, v{8+e}, v140")
    for s in range(1, 16):
        for e in range(8):
            a(f"v_fmac_f32 v{8+e}, v{8+8*s+e}, v{140+s}")
    for q in range(4):
        a(f"v_cvt_pk_bf16_f32 v{24+q}, v{8+2*q}, v{9+2*q}")
    stamp(a, 6)
    af_via_lds(a, 24, L_AF)
    wjob_consume(a, L_WT)
    a("s_lshl_b32 s14, s9, 17")
    a("s_lshl_b32 s12, s8, 11")
    a("s_add_u32 s14, s14, s12")
    a(f"s_add_u32 s14, s14, {SP}")
    a("s_lshl_b32 s12, s9, 6")
    a("s_add_u32 s15, s8, s12")
    a("s_lshl_b32 s15, s15, 2")
    a(f"s_add_u32 s15, s15, {FS}")
    wjob_store(a, 14, 512, 15)
    stamp(a, 7)
    stamp_flush(a)
    a("s_endpgm")

    a.label("L_comm")
    a("v_mov_b32 v2, 0")
    a("v_lshlrev_b32 v3, 2, v0")
    a("ds_write_b32 v3, v2")
    a("s_waitcnt lgkmcnt(0)")
    a("s_barrier")
    a(f"s_add_u32 s{S_TAG}, s{S_TAG}, 1")
    a("s_lshr_b32 s8, s2, 4")
    a("s_and_b32 s8, s8, 3")
    a("s_lshr_b32 s9, s2, 6")
    a("s_lshl_b32 s12, s8, 8")
    a(f"s_add_u32 s12, s12, {FQ}")
    a("v_lshlrev_b32 v6, 2, v0")
    poll_flags(a, 6, 12, 7)
    stamp(a, 1)
    a("s_lshl_b32 s12, s9, 14")
    a("s_lshl_b32 s13, s8, 12")
    a("s_add_u32 s12, s12, s13")
    a(f"s_add_u32 s12, s12, {QP}")
    a("v_lshlrev_b32 v2, 6, v0")
    for sp in range(8):
        a(f"s_add_u32 s5, s12, {sp*65536}")
        for q in range(4):
            a(f"buffer_load_dwordx4 {vr(8+16*sp+4*q)}, v2, {srd(SRD_WS)}, s5 offen offset:{16*q} sc1")
    a("s_waitcnt vmcnt(0)")
    for sp in range(1, 8):
        for e in range(16):
            a(f"v_add_f32 v{8+e}, v{8+e}, v{8+16*sp+e}")
    for q in range(8):
        a(f"v_cvt_pk_bf16_f32 v{24+q}, v{8+2*q}, v{9+2*q}")
    a("v_lshlrev_b32 v2, 5, v0")
    a(f"ds_write_b128 v2, v[24:27] offset:{L_QS}")
    a(f"ds_write_b128 v2, v[28:31] offset:{L_QS+16}")
    lds_inc(a, L_QRDY)
    stamp(a, 2)
    a("s_cmp_lt_u32 s2, 32")
    a("s_cbranch_scc1 L_final")
    stamp_flush(a)
    a("s_endpgm")
    a.label("L_final")
    a("s_and_b32 s8, s2, 7")
    a("s_lshr_b32 s9, s2, 3")
    a("s_lshl_b32 s12, s8, 8")
    a(f"s_add_u32 s12, s12, {FS}")
    a("v_lshlrev_b32 v6, 2, v0")
    a("s_mov_b32 s10, -1")
    a("s_mov_b32 s11, 0x0fffffff")
    poll_flags(a, 6, 12, 7, execmask="s[10:11]")
    stamp(a, 3)
    a("v_and_b32 v3, 31, v0")
    a("v_lshlrev_b32 v4, 3, v3")
    a("s_lshl_b32 s13, s9, 11")
    a("s_lshl_b32 s14, s8, 8")
    a("s_add_u32 s13, s13, s14")
    a(f"buffer_load_dwordx2 v[140:141], v4, {srd(SRD_X)}, s13 offen")
    a("v_lshrrev_b32 v2, 5, v0")
    a("v_lshlrev_b32 v2, 16, v2")
    a("v_lshl_add_u32 v2, v3, 4, v2")
    a("s_lshl_b32 s12, s8, 17")
    a("s_lshl_b32 s14, s9, 9")
    a("s_add_u32 s12, s12, s14")
    a(f"s_add_u32 s12, s12, {SP}")
    for j in range(28, 32):
        for e in range(4):
            a(f"v_mov_b32 v{8+4*j+e}, 0")
    for j in range(32):
        if j == 28:
            a("s_mov_b32 exec_lo, -1"); a("s_mov_b32 exec_hi, 0")
        a(f"s_add_u32 s5, s12, {j*2048}")
        a(f"buffer_load_dwordx4 {vr(8+4*j)}, v2, {srd(SRD_WS)}, s5 offen sc1")
    a("s_mov_b64 exec, -1")
    a("s_waitcnt vmcnt(0)")
    for j in range(1, 32):
        for e in range(4):
            a(f"v_add_f32 v{8+e}, v{8+e}, v{8+4*j+e}")
    for e in range(4):
        a(f"v_mov_b32 v{12+e}, v{8+e}")
    a("s_nop 1")
    for e in range(4):
        a(f"v_permlane32_swap_b32 v{8+e}, v{12+e}")
    a("s_nop 1")
    a(f"s_mov_b32 s14, {f32hex(-1.4426950408889634)}")
    for e in range(4):
        s_, f_, t = 8+e, 12+e, 16+e
        rne(a, s_, s_)
        rne(a, f_, f_)
        a(f"v_mul_f32 v{t}, s14, v{f_}")
        a(f"v_exp_f32 v{t}, v{t}")
        a("s_nop 0")
        a(f"v_add_f32 v{t}, 1.0, v{t}")
        a(f"v_rcp_f32 v{t}, v{t}")
        a("s_nop 0")
        a(f"v_mul_f32 v{t}, v{t}, v{f_}")
        rne(a, t, t)
        a(f"v_mul_f32 v{t}, v{t}, v{s_}")
        rne(a, t, t)
        xr = 140 + e // 2
        if e % 2 == 0:
            a(f"v_lshlrev_b32 v{s_}, 16, v{xr}")
        else:
            a(f"v_and_b32 v{s_}, 0xffff0000, v{xr}")
        a(f"v_add_f32 v{t}, v{t}, v{s_}")
    a("v_cvt_pk_bf16_f32 v20, v16, v17")
    a("v_cvt_pk_bf16_f32 v21, v18, v19")
    a("s_mov_b32 exec_lo, -1"); a("s_mov_b32 exec_hi, 0")
    a(f"buffer_store_dwordx2 v[20:21], v4, {srd(SRD_OUT)}, s13 offen")
    stamp(a, 4)
    stamp_flush(a)
    a("s_mov_b64 exec, -1")
    a("s_cmp_lg_u32 s2, 0")
    a("s_cbranch_scc1 L_end")
    a("s_mov_b64 exec, 1")
    a("v_mov_b32 v2, 0")
    a(f"v_mov_b32 v3, s{S_TAG}")
    a(f"buffer_store_dword v3, v2, {srd(SRD_WS)}, 0 offen sc1")
    a.label("L_end")
    a("s_endpgm")

    out += a.l
    out += ['.section .rodata,"a"', ".p2align 6", f".amdhsa_kernel {NAME}",
            "  .amdhsa_next_free_vgpr 168", "  .amdhsa_next_free_sgpr 96", "  .amdhsa_accum_offset 168",
            "  .amdhsa_group_segment_fixed_size 0", "  .amdhsa_kernarg_size 96", "  .amdhsa_user_sgpr_count 2",
            "  .amdhsa_user_sgpr_kernarg_segment_ptr 1", "  .amdhsa_system_sgpr_workgroup_id_x 1",
            ".end_amdhsa_kernel"]
    open(path, "w").write("\n".join(out) + "\n")

def wjob_consume_dyn(a):
    def rd(tb, T):
        for i in range(8):
            a(f"ds_read_b128 {vr(T+4*i)}, v3 offset:{(tb*8+i)*1024}")
    rd(0, W_T0)
    for tb in range(4):
        T = W_T0 if tb % 2 == 0 else W_T1
        if tb < 3:
            rd(tb+1, W_T1 if tb % 2 == 0 else W_T0)
            a("s_waitcnt lgkmcnt(8)")
        else:
            a("s_waitcnt lgkmcnt(0)")
        for w in range(4):
            TB = W_TB + 8*(w % 2)
            for p in range(4):
                a(f"v_perm_b32 v{TB+p}, v{T+4*(2*p+1)+w}, v{T+4*(2*p)+w}, s{S_SELLO}")
            for p in range(4):
                a(f"v_perm_b32 v{TB+4+p}, v{T+4*(2*p+1)+w}, v{T+4*(2*p)+w}, s{S_SELHI}")
            a("s_nop 1")
            for h in range(2):
                t = 2*w + h
                c = "0" if tb == 0 else vr(W_ACC+4*t)
                a(f"v_mfma_f32_16x16x32_bf16 {vr(W_ACC+4*t)}, {vr(W_AF+4*tb)}, {vr(TB+4*h)}, {c}")

if __name__ == "__main__":
    depth = int(sys.argv[2]) if len(sys.argv) > 2 else 8
    STAMPS = "stamps" in sys.argv
    for x in sys.argv[3:]:
        if "=" in x:
            k, v = x.split("=")
            globals()[k] = int(v)
    gen(sys.argv[1], depth)
```

```python
import struct, sys

NAME = "recurrent_scan__gqa_block_cached__glu_gated_geglu__decode_kernel"

def f32hex(x):
    return "0x%08x" % struct.unpack("<I", struct.pack("<f", x))[0]

EPOCH = 0
FQ = 0x1000
FGU = 0x2000
FS = 0x3000
QP = 0x100000
GUP = 0x200000
OREC = 0x400000
SP = 0x800000

L_QRDY = 0
L_OCNT = 4
L_ISS = 8
L_QJ = 12
L_KISS = 24
L_GO = 16
L_REC = 20
L_ML = 0x100
L_QS = 0x400
L_AF = 0xC00
L_OP = 0x2000
L_WT = 0xA000
LDS_BYTES = 0xA000 + 3 * 0x8000

S_TAG = 40
S_TMO = 41
SRD_K, SRD_V, SRD_W, SRD_WS, SRD_X, SRD_OUT = 44, 48, 52, 56, 60, 64
S_SELLO, S_SELHI, S_SCALE, S_LOG2E = 68, 69, 70, 71

class A:
    def __init__(self):
        self.l = []
        self.n = 0
    def __call__(self, s):
        self.l.append("    " + s)
    def label(self, s):
        self.l.append(s + ":")
    def uniq(self, p):
        self.n += 1
        return f"L_{p}_{self.n}"

def vr(b, n=4):
    return f"v[{b}:{b+n-1}]"

def srd(b):
    return f"s[{b}:{b+3}]"

def mk_srd(a, d, ptr, nbytes):
    a(f"s_mov_b32 s{d}, s{ptr}")
    a(f"s_mov_b32 s{d+1}, s{ptr+1}")
    a(f"s_mov_b32 s{d+2}, {nbytes}")
    a(f"s_mov_b32 s{d+3}, 0x00020000")

def lds_wait(a, addr, n, vtmp=2, vz=3):
    lp = a.uniq("lw"); dn = a.uniq("lwd")
    a(f"s_mov_b32 s{S_TMO}, 400000")
    a(f"v_mov_b32 v{vz}, 0")
    a.label(lp)
    a(f"ds_read_b32 v{vtmp}, v{vz} offset:{addr}")
    a("s_waitcnt lgkmcnt(0)")
    a(f"v_readfirstlane_b32 s4, v{vtmp}")
    a("s_nop 3")
    a(f"s_cmp_ge_u32 s4, {n}")
    a(f"s_cbranch_scc1 {dn}")
    a("s_sleep 1")
    a(f"s_sub_u32 s{S_TMO}, s{S_TMO}, 1")
    a(f"s_cmp_lg_u32 s{S_TMO}, 0")
    a(f"s_cbranch_scc1 {lp}")
    a.label(dn)

def lds_inc(a, addr, v1=2, v2=3):
    a("s_mov_b64 exec, 1")
    a(f"v_mov_b32 v{v1}, 0")
    a(f"v_mov_b32 v{v2}, 1")
    a(f"ds_add_u32 v{v1}, v{v2} offset:{addr}")
    a("s_mov_b64 exec, -1")

def poll_flags(a, voff, soff_reg, vdst, width=1, tagreg_idx=0, execmask=None):
    lp = a.uniq("pl"); dn = a.uniq("pld")
    if NOSYNC:
        a("s_waitcnt vmcnt(0)")
        return
    a(f"s_mov_b32 s{S_TMO}, 100000")
    if execmask is not None:
        a(f"s_mov_b64 exec, {execmask}")
    a.label(lp)
    if width == 1:
        a(f"buffer_load_dword v{vdst}, v{voff}, {srd(SRD_WS)}, s{soff_reg} offen sc1")
    else:
        a(f"buffer_load_dwordx4 {vr(vdst)}, v{voff}, {srd(SRD_WS)}, s{soff_reg} offen sc1")
    a("s_waitcnt vmcnt(0)")
    a(f"v_cmp_ne_u32 vcc, s{S_TAG}, v{vdst+tagreg_idx}")
    a("s_nop 3")
    a("s_cmp_eq_u64 vcc, 0")
    a(f"s_cbranch_scc1 {dn}")
    a(f"s_sleep {PSLEEP}")
    a(f"s_sub_u32 s{S_TMO}, s{S_TMO}, 1")
    a(f"s_cmp_lg_u32 s{S_TMO}, 0")
    a(f"s_cbranch_scc1 {lp}")
    a.label(dn)
    if execmask is not None:
        a("s_mov_b64 exec, -1")

STAMPS = False
WPACE = 64
QTHR = 8
NOPOLL = 0
QTRIG = 16
RSLEEP = 8
STF = 'sc1'
NOFLAG = 0
NOGATH = 0
THR = 32
QWAIT = 0
VDEPTH = 4
VFROM = 16
STRIP = 0
TLATE = 0
L2G = 1
FBAR = 2
PRIO = 0
ABAR = 2
GATE_GU = 0
NOSYNC = 0
PSLEEP = 2
QPACE = 64
TPACE = 64
STAMP_BASE = 0xF00000
def stamp(a, idx):
    if not STAMPS: return
    a("s_memrealtime s[90:91]")
    a("s_waitcnt lgkmcnt(0)")
    a(f"s_mov_b32 s{72+idx}, s90")

def stamp_flush(a):
    if not STAMPS: return
    a("s_mov_b64 exec, 1")
    a("s_lshl_b32 s92, s2, 10")
    a("s_lshl_b32 s93, s3, 6")
    a("s_add_u32 s92, s92, s93")
    a(f"s_add_u32 s92, s92, {STAMP_BASE}")
    a("v_mov_b32 v1, 0")
    for q in range(4):
        for e in range(4):
            a(f"v_mov_b32 v{8+4*q+e}, s{72+4*q+e}")
        a(f"buffer_store_dwordx4 v[{8+4*q}:{11+4*q}], v1, {srd(SRD_WS)}, s92 offen offset:{16*q}")

S_MFF, S_PA, S_PB = 42, 43, 88
def tag_setup(a, vt):
    for i in range(4):
        a(f"v_mov_b32 v{vt+i}, s{S_TAG}")
        if i:
            a(f"v_lshrrev_b32 v{vt+i}, {8*i}, v{vt+i}")

def tag_apply(a, R, vt):
    for i in range(4):
        a(f"v_bfi_b32 v{R+i}, s{S_MFF}, v{vt+i}, v{R+i}")

def tag_check(a, R, acc, t1, t2, first=False):
    a(f"v_perm_b32 v{t1}, v{R+1}, v{R}, s{S_PA}")
    a(f"v_perm_b32 v{t2}, v{R+3}, v{R+2}, s{S_PB}")
    a(f"v_or_b32 v{t1}, v{t1}, v{t2}")
    if first:
        a(f"v_xor_b32 v{acc}, s{S_TAG}, v{t1}")
    else:
        a(f"v_xor_b32 v{t1}, s{S_TAG}, v{t1}")
        a(f"v_or_b32 v{acc}, v{acc}, v{t1}")

def gather(a, emit, acc):
    lp = a.uniq("gr"); dn = a.uniq("grd")
    emit("" if L2G else "sc1")
    if NOSYNC: return
    a(f"v_cmp_ne_u32 vcc, 0, v{acc}")
    a("s_nop 3")
    a("s_cmp_eq_u64 vcc, 0")
    a(f"s_cbranch_scc1 {dn}")
    a(f"s_mov_b32 s{S_TMO}, 100000")
    a.label(lp)
    emit("sc1")
    a(f"v_cmp_ne_u32 vcc, 0, v{acc}")
    a("s_nop 3")
    a("s_cmp_eq_u64 vcc, 0")
    a(f"s_cbranch_scc1 {dn}")
    a(f"s_sleep {RSLEEP}")
    a(f"s_sub_u32 s{S_TMO}, s{S_TMO}, 1")
    a(f"s_cmp_lg_u32 s{S_TMO}, 0")
    a(f"s_cbranch_scc1 {lp}")
    a.label(dn)

def gather_retry_begin(a):
    lp = a.uniq("gr")
    a(f"s_mov_b32 s{S_TMO}, 100000")
    a.label(lp)
    return lp

def gather_retry_end(a, lp, acc):
    dn = a.uniq("grd")
    if NOSYNC: return
    a(f"v_cmp_ne_u32 vcc, 0, v{acc}")
    a("s_nop 3")
    a("s_cmp_eq_u64 vcc, 0")
    a(f"s_cbranch_scc1 {dn}")
    a("s_sleep 1")
    a(f"s_sub_u32 s{S_TMO}, s{S_TMO}, 1")
    a(f"s_cmp_lg_u32 s{S_TMO}, 0")
    a(f"s_cbranch_scc1 {lp}")
    a.label(dn)

def rne(a, dst, src):
    a(f"v_cvt_pk_bf16_f32 v{dst}, v{src}, v{src}")
    a(f"v_lshlrev_b32 v{dst}, 16, v{dst}")

def row_reduce_add(a, v):
    for r in (8, 4, 2, 1):
        a("s_nop 1")
        a(f"v_add_f32_dpp v{v}, v{v}, v{v} row_ror:{r} row_mask:0xf bank_mask:0xf")

def row_reduce_max(a, v):
    for r in (8, 4, 2, 1):
        a("s_nop 1")
        a(f"v_max_f32_dpp v{v}, v{v}, v{v} row_ror:{r} row_mask:0xf bank_mask:0xf")

def xg_reduce(a, v, t, op):
    a(f"v_mov_b32 v{t}, v{v}")
    a("s_nop 1")
    a(f"v_permlane32_swap_b32 v{v}, v{t}")
    a("s_nop 1")
    a(f"{op} v{v}, v{v}, v{t}")
    a(f"v_mov_b32 v{t}, v{v}")
    a("s_nop 1")
    a(f"v_permlane16_swap_b32 v{v}, v{t}")
    a("s_nop 1")
    a(f"{op} v{v}, v{v}, v{t}")

W_T0, W_T1, W_ACC, W_TB, W_AF, W_M2 = 8, 40, 72, 104, 120, 136

def wjob_issue(a, rs, s_base, lds_slot, pace=64, barrier=False, dyn=None, mid=None, gate=None, bar_at=2):
    n = 0
    done = False
    for tb in range(4):
        for i in range(8):
            if barrier and n == bar_at:
                a("s_waitcnt lgkmcnt(0)")
                a("s_barrier")
                if gate: gate()
            if n == pace:
                if mid: mid()
                done = True
            if n >= pace:
                a(f"s_waitcnt vmcnt({pace-1})")
            a(f"s_add_u32 s5, s{s_base}, {(32*tb+i)*rs}")
            if dyn is None:
                a(f"s_mov_b32 m0, {lds_slot + (tb*8+i)*1024}")
            else:
                a(f"s_add_u32 s14, s{dyn}, {(tb*8+i)*1024}")
                a("s_mov_b32 m0, s14")
            a("s_nop 0")
            a(f"buffer_load_dwordx4 v1, {srd(SRD_W)}, s5 offen nt lds")
            n += 1
    if barrier and bar_at >= 32:
        a("s_waitcnt lgkmcnt(0)")
        a("s_barrier")
    if not done:
        if mid: mid()

def wjob_voff(a, rs):
    a("v_lshrrev_b32 v2, 4, v0")
    a(f"s_mov_b32 s5, {8*rs}")
    a("v_mul_lo_u32 v2, v2, s5")
    a("v_and_b32 v1, 15, v0")
    a("v_lshlrev_b32 v1, 4, v1")
    a("v_add_u32 v1, v1, v2")

def wjob_consume(a, lds_slot):
    a("v_lshlrev_b32 v2, 4, v0")
    def rd(tb, T):
        for i in range(8):
            off = lds_slot + (tb*8+i)*1024
            a(f"ds_read_b128 {vr(T+4*i)}, v3 offset:{(tb*8+i)*1024}")
    a(f"v_add_u32 v3, {lds_slot}, v2")
    rd(0, W_T0)
    for tb in range(4):
        T = W_T0 if tb % 2 == 0 else W_T1
        if tb < 3:
            rd(tb+1, W_T1 if tb % 2 == 0 else W_T0)
            a("s_waitcnt lgkmcnt(8)")
        else:
            a("s_waitcnt lgkmcnt(0)")
        for w in range(4):
            TB = W_TB + 8*(w % 2)
            for p in range(4):
                a(f"v_perm_b32 v{TB+p}, v{T+4*(2*p+1)+w}, v{T+4*(2*p)+w}, s{S_SELLO}")
            for p in range(4):
                a(f"v_perm_b32 v{TB+4+p}, v{T+4*(2*p+1)+w}, v{T+4*(2*p)+w}, s{S_SELHI}")
            a("s_nop 1")
            for h in range(2):
                t = 2*w + h
                c = "0" if tb == 0 else vr(W_ACC+4*t)
                a(f"v_mfma_f32_16x16x32_bf16 {vr(W_ACC+4*t)}, {vr(W_AF+4*tb)}, {vr(TB+4*h)}, {c}")

def wjob_store(a, s_out, mstride, s_flag, flag=True):
    tag_setup(a, W_M2)
    a("s_nop 7")
    R = W_T0
    for m in range(4):
        for t in range(8):
            a(f"v_bfi_b32 v{R+8*m+t}, s{S_MFF}, v{W_M2+(t&3)}, v{W_ACC+4*t+m}")
    a("v_lshlrev_b32 v2, 4, v0")
    a("s_mov_b64 exec, 0xffff")
    for m in range(4):
        a(f"s_add_u32 s5, s{s_out}, {m*mstride}")
        a(f"buffer_store_dwordx4 {vr(R+8*m)}, v2, {srd(SRD_WS)}, s5 offen {STF}")
        a(f"buffer_store_dwordx4 {vr(R+8*m+4)}, v2, {srd(SRD_WS)}, s5 offen offset:256 {STF}")
    a("s_mov_b64 exec, 1")
    a("v_mov_b32 v2, 0")
    if flag and not NOFLAG:
        a(f"buffer_store_dword v{W_M2}, v2, {srd(SRD_WS)}, s{s_flag} offen {STF}")
    a("s_mov_b64 exec, -1")

def ln_issue(a, s_r0x2):
    a("v_lshrrev_b32 v2, 4, v0")
    a("v_lshlrev_b32 v2, 11, v2")
    a("v_and_b32 v3, 15, v0")
    a("v_lshlrev_b32 v3, 7, v3")
    a("v_add_u32 v2, v2, v3")
    for k in range(8):
        a(f"buffer_load_dwordx4 {vr(W_T0+4*k)}, v2, {srd(SRD_X)}, 0 offen offset:{16*k}")
    a("v_and_b32 v3, 3, v0")
    a("v_lshlrev_b32 v3, 11, v3")
    a("v_lshrrev_b32 v4, 4, v0")
    a("v_lshlrev_b32 v4, 4, v4")
    a("v_add_u32 v3, v3, v4")
    for tb in range(4):
        a(f"buffer_load_dwordx4 {vr(W_AF+4*tb)}, v3, {srd(SRD_X)}, s{s_r0x2} offen offset:{64*tb}")

def ln_compute(a):
    X = W_T0
    a("v_mov_b32 v2, 0")
    a("v_mov_b32 v3, 0")
    for r in range(32):
        a(f"v_lshlrev_b32 v4, 16, v{X+r}")
        a(f"v_and_b32 v5, 0xffff0000, v{X+r}")
        a("v_add_f32 v2, v2, v4")
        a("v_add_f32 v3, v3, v5")
    a("v_add_f32 v2, v2, v3")
    row_reduce_add(a, 2)
    a(f"v_mul_f32 v2, {f32hex(1.0/1024)}, v2")
    a("v_mov_b32 v3, 0")
    a("v_mov_b32 v6, 0")
    for r in range(32):
        a(f"v_lshlrev_b32 v4, 16, v{X+r}")
        a(f"v_and_b32 v5, 0xffff0000, v{X+r}")
        a("v_sub_f32 v4, v4, v2")
        a("v_sub_f32 v5, v5, v2")
        a("v_fmac_f32 v3, v4, v4")
        a("v_fmac_f32 v6, v5, v5")
    a("v_add_f32 v3, v3, v6")
    row_reduce_add(a, 3)
    a(f"v_mul_f32 v3, {f32hex(1.0/1024)}, v3")
    rne(a, 2, 2)
    rne(a, 3, 3)
    a(f"v_add_f32 v3, {f32hex(1e-5)}, v3")
    rne(a, 3, 3)
    a("v_sqrt_f32 v3, v3")
    a("s_nop 0")
    rne(a, 3, 3)
    a("v_and_b32 v4, 3, v0")
    a("v_lshlrev_b32 v4, 6, v4")
    a("ds_bpermute_b32 v2, v4, v2")
    a("ds_bpermute_b32 v3, v4, v3")
    a("s_waitcnt lgkmcnt(0)")
    a("v_rcp_f32 v4, v3")
    a("s_nop 0")
    for r in range(16):
        R = W_AF + r
        a(f"v_lshlrev_b32 v5, 16, v{R}")
        a(f"v_and_b32 v6, 0xffff0000, v{R}")
        a("v_sub_f32 v5, v5, v2")
        a("v_sub_f32 v6, v6, v2")
        a("v_cvt_pk_bf16_f32 v7, v5, v6")
        a("v_lshlrev_b32 v5, 16, v7")
        a("v_and_b32 v6, 0xffff0000, v7")
        a(f"v_mul_f32 v{W_M2}, v5, v4")
        a(f"v_mul_f32 v{W_M2+1}, v6, v4")
        a(f"v_fma_f32 v5, -v{W_M2}, v3, v5")
        a(f"v_fma_f32 v6, -v{W_M2+1}, v3, v6")
        a(f"v_fma_f32 v{W_M2}, v5, v4, v{W_M2}")
        a(f"v_fma_f32 v{W_M2+1}, v6, v4, v{W_M2+1}")
        a(f"v_cvt_pk_bf16_f32 v{R}, v{W_M2}, v{W_M2+1}")

def af_via_lds(a, vpk, lds_af):
    a("v_lshlrev_b32 v2, 4, v0")
    a(f"ds_write_b128 v2, {vr(vpk)} offset:{lds_af}")
    a("v_and_b32 v2, 3, v0")
    a("v_lshlrev_b32 v2, 8, v2")
    a("v_lshrrev_b32 v3, 4, v0")
    a("v_lshlrev_b32 v3, 4, v3")
    a("v_add_u32 v2, v2, v3")
    a("s_waitcnt lgkmcnt(0)")
    for tb in range(4):
        a(f"ds_read_b128 {vr(W_AF+4*tb)}, v2 offset:{lds_af + 64*tb}")
    a("s_waitcnt lgkmcnt(0)")

def gen(path, depth=8):
    a = A()
    hdr = open("recurrent_scan__gqa_block_cached__glu_gated_geglu__decode.s.ref").read().split("\n")
    top = [l for l in hdr if l.startswith(";") and "@launch" not in l]
    out = top + [f"; @launch grid=(256,1,1) block=(768,1,1) lds={LDS_BYTES}"]
    out += ['.amdgcn_target "amdgcn-amd-amdhsa--gfx950"', ".text", f".globl {NAME}", ".p2align 8",
            f".type {NAME},@function", f"{NAME}:"]
    a("s_cmp_ge_u32 s2, 256")
    a("s_cbranch_scc1 L_end")
    a("s_load_dwordx16 s[16:31], s[0:1], 0")
    a("s_load_dwordx8 s[32:39], s[0:1], 64")
    a("v_lshrrev_b32 v1, 6, v0")
    a("v_and_b32 v0, 63, v0")
    a("s_nop 0")
    a("v_readfirstlane_b32 s3, v1")
    a("s_and_b32 s4, s2, 7")
    a("s_lshr_b32 s5, s2, 3")
    a("s_lshl_b32 s96, s4, 5")
    a("s_add_u32 s96, s96, s5")
    a("s_mul_i32 s97, s4, 28")
    a("s_add_u32 s97, s97, s5")
    a(f"s_mov_b32 s{S_SELLO}, 0x05040100")
    a(f"s_mov_b32 s{S_SELHI}, 0x07060302")
    a(f"s_mov_b32 s{S_SCALE}, {f32hex(128 ** -0.5)}")
    a(f"s_mov_b32 s{S_LOG2E}, {f32hex(1.4426950408889634)}")
    a(f"s_mov_b32 s{S_MFF}, 0xff")
    a(f"s_mov_b32 s{S_PA}, 0x0c0c0400")
    a(f"s_mov_b32 s{S_PB}, 0x04000c0c")
    a("s_waitcnt lgkmcnt(0)")
    a(f"s_load_dword s{S_TAG}, s[38:39], {EPOCH}")
    mk_srd(a, SRD_K, 18, 0x2000000)
    mk_srd(a, SRD_V, 20, 0x2000000)
    mk_srd(a, SRD_WS, 38, 0x10000000)
    mk_srd(a, SRD_X, 16, 8192)
    mk_srd(a, SRD_OUT, 34, 8192)
    if STAMPS:
        for i in range(16): a(f"s_mov_b32 s{72+i}, 0")
    stamp(a, 0)
    a("s_cmp_ge_u32 s3, 8")
    a("s_cbranch_scc1 L_notattn")

    K0, V0, Q0, S0 = 8, 72, 136, 152
    a("s_lshl_b32 s6, s96, 17")
    a("s_lshl_b32 s5, s3, 14")
    a("s_add_u32 s6, s6, s5")
    a("v_and_b32 v2, 15, v0")
    a("v_lshrrev_b32 v3, 4, v0")
    a("v_lshlrev_b32 v4, 8, v2")
    a("v_lshl_add_u32 v4, v3, 4, v4")
    a("v_lshlrev_b32 v5, 10, v3")
    a("v_lshl_add_u32 v5, v2, 4, v5")
    loads = []
    for kt in range(4):
        for c in range(4):
            loads.append((SRD_K, 4, K0+16*kt+4*c, kt*4096, c*64))
    for u in range(2):
        for i in range(8):
            loads.append((SRD_V, 5, V0+32*u+4*i, u*8192+(i >> 2)*4096, (i & 3)*256))
    for n, (sr, vo, dst, so, io) in enumerate(loads):
        if n == ABAR:
            a("s_waitcnt lgkmcnt(0)")
            a("s_barrier")
        dd = depth if n < VFROM else VDEPTH
        if n >= dd:
            a(f"s_waitcnt vmcnt({dd-1})")
        a(f"s_add_u32 s7, s6, {so}")
        a(f"buffer_load_dwordx4 {vr(dst)}, v{vo}, {srd(sr)}, s7 offen offset:{io} nt")
        if NOPOLL and n == QTRIG:
            lds_inc(a, L_KISS)
    a(f"s_add_u32 s{S_TAG}, s{S_TAG}, 1")
    stamp(a, 1)
    if STRIP:
        a("s_waitcnt vmcnt(0)")
        stamp(a, 5)
        stamp_flush(a)
        a("s_endpgm")
    lds_inc(a, L_ISS)
    lds_wait(a, L_QRDY, 1)
    stamp(a, 2)
    a("v_and_b32 v2, 7, v0")
    a("v_lshlrev_b32 v2, 8, v2")
    a("v_lshrrev_b32 v3, 4, v0")
    a("v_lshl_add_u32 v2, v3, 4, v2")
    for c in range(4):
        a(f"ds_read_b128 {vr(Q0+4*c)}, v2 offset:{L_QS + 64*c}")
    a("s_waitcnt vmcnt(16) lgkmcnt(0)")
    stamp(a, 3)
    for kt in range(4):
        for c in range(4):
            cc = "0" if c == 0 else vr(S0+4*kt)
            a(f"v_mfma_f32_16x16x32_bf16 {vr(S0+4*kt)}, {vr(K0+16*kt+4*c)}, {vr(Q0+4*c)}, {cc}")
    a("s_nop 7")
    a("s_nop 1")
    for p in range(8):
        x, y = S0+2*p, S0+2*p+1
        a(f"v_cvt_pk_bf16_f32 v2, v{x}, v{y}")
        a(f"v_lshlrev_b32 v{x}, 16, v2")
        a(f"v_and_b32 v{y}, 0xffff0000, v2")
        a(f"v_mul_f32 v{x}, s{S_SCALE}, v{x}")
        a(f"v_mul_f32 v{y}, s{S_SCALE}, v{y}")
        a(f"v_cvt_pk_bf16_f32 v2, v{x}, v{y}")
        a(f"v_lshlrev_b32 v{x}, 16, v2")
        a(f"v_and_b32 v{y}, 0xffff0000, v2")
    a(f"v_max3_f32 v6, v{S0}, v{S0+1}, v{S0+2}")
    for i in range(3, 15, 2):
        a(f"v_max3_f32 v6, v6, v{S0+i}, v{S0+i+1}")
    a(f"v_max_f32 v6, v6, v{S0+15}")
    xg_reduce(a, 6, 7, "v_max_f32")
    a(f"v_mul_f32 v6, s{S_LOG2E}, v6")
    for i in range(16):
        a(f"v_fma_f32 v{S0+i}, v{S0+i}, s{S_LOG2E}, -v6")
    for i in range(16):
        a(f"v_exp_f32 v{S0+i}, v{S0+i}")
    a("s_nop 0")
    a(f"v_add_f32 v7, v{S0}, v{S0+1}")
    for i in range(2, 16):
        a(f"v_add_f32 v7, v7, v{S0+i}")
    xg_reduce(a, 7, 2, "v_add_f32")
    P0 = 56
    for u in range(2):
        for q in range(4):
            a(f"v_cvt_pk_bf16_f32 v{P0+4*u+q}, v{S0+8*u+2*q}, v{S0+8*u+2*q+1}")
    stamp(a, 4)
    O0, TB0 = 8, 40
    for u in range(2):
        a(f"s_waitcnt vmcnt({8 if u == 0 else 0})")
        for w in range(4):
            TB = TB0 + 8*(w % 2)
            for p in range(4):
                a(f"v_perm_b32 v{TB+p}, v{V0+32*u+4*(2*p+1)+w}, v{V0+32*u+4*(2*p)+w}, s{S_SELLO}")
            for p in range(4):
                a(f"v_perm_b32 v{TB+4+p}, v{V0+32*u+4*(2*p+1)+w}, v{V0+32*u+4*(2*p)+w}, s{S_SELHI}")
            a("s_nop 1")
            for h in range(2):
                t = 2*w+h
                cc = "0" if u == 0 else vr(O0+4*t)
                a(f"v_mfma_f32_16x16x32_bf16 {vr(O0+4*t)}, {vr(P0+4*u)}, {vr(TB+4*h)}, {cc}")
    a("s_nop 7")
    a("s_nop 1")
    R0 = 72
    for r in range(4):
        for t in range(8):
            a(f"v_mov_b32 v{R0+8*r+t}, v{O0+4*t+r}")
    a("v_lshrrev_b32 v2, 4, v0")
    a("v_lshlrev_b32 v2, 11, v2")
    a("v_and_b32 v3, 15, v0")
    a("v_lshl_add_u32 v2, v3, 5, v2")
    a("s_lshl_b32 s5, s3, 12")
    a("v_add_u32 v2, s5, v2")
    a("s_mov_b32 exec_lo, -1"); a("s_mov_b32 exec_hi, 0")
    for r in range(4):
        a(f"ds_write_b128 v2, {vr(R0+8*r)} offset:{L_OP + r*512}")
        a(f"ds_write_b128 v2, {vr(R0+8*r+4)} offset:{L_OP + r*512 + 16}")
    a("s_mov_b64 exec, -1")
    a("v_and_b32 v2, 7, v0")
    a("v_lshlrev_b32 v2, 3, v2")
    a("s_lshl_b32 s5, s3, 6")
    a("v_add_u32 v2, s5, v2")
    a(f"ds_write_b64 v2, v[6:7] offset:{L_ML}")
    stamp(a, 5)
    lds_inc(a, L_OCNT)
    lds_wait(a, L_OCNT, 8)
    stamp(a, 6)
    a("s_lshl_b32 s5, s3, 3")
    a("v_mov_b32 v2, s5")
    for w in range(8):
        a(f"ds_read_b64 v[{8+2*w}:{9+2*w}], v2 offset:{L_ML + w*64}")
    a("s_lshl_b32 s5, s3, 9")
    a("v_and_b32 v3, 31, v0")
    a("v_lshlrev_b32 v3, 4, v3")
    a("v_add_u32 v3, s5, v3")
    for w in range(8):
        a(f"ds_read_b128 {vr(24+4*w)}, v3 offset:{L_OP + w*4096}")
    tag_setup(a, 64)
    a("s_waitcnt lgkmcnt(8)")
    a("v_max3_f32 v4, v8, v10, v12")
    a("v_max3_f32 v4, v4, v14, v16")
    a("v_max3_f32 v4, v4, v18, v20")
    a("v_max_f32 v4, v4, v22")
    for w in range(8):
        a(f"v_sub_f32 v{8+2*w}, v{8+2*w}, v4")
    for w in range(8):
        a(f"v_exp_f32 v{8+2*w}, v{8+2*w}")
    a("s_waitcnt lgkmcnt(0)")
    a("v_mul_f32 v5, v8, v9")
    for e in range(4):
        a(f"v_mul_f32 v{60+e}, v8, v{24+e}")
    for w in range(1, 8):
        a(f"v_fmac_f32 v5, v{8+2*w}, v{9+2*w}")
        for e in range(4):
            a(f"v_fmac_f32 v{60+e}, v{8+2*w}, v{24+4*w+e}")
    tag_apply(a, 60, 64)
    a("s_lshr_b32 s5, s96, 4")
    a("s_and_b32 s5, s5, 3")
    a("s_lshl_b32 s5, s5, 3")
    a("s_add_u32 s5, s5, s3")
    a("s_lshl_b32 s5, s5, 2")
    a("s_lshr_b32 s6, s96, 6")
    a("s_add_u32 s5, s5, s6")
    a("s_lshl_b32 s5, s5, 4")
    a("s_and_b32 s6, s96, 15")
    a("s_add_u32 s5, s5, s6")
    a("s_lshl_b32 s5, s5, 10")
    a(f"s_add_u32 s5, s5, {OREC}")
    a("v_lshlrev_b32 v3, 4, v0")
    a(f"v_mov_b32 v6, s{S_TAG}")
    a(f"v_mov_b32 v7, s{S_TAG}")
    a("s_mov_b32 exec_lo, -1"); a("s_mov_b32 exec_hi, 0")
    a(f"buffer_store_dwordx4 v[60:63], v3, {srd(SRD_WS)}, s5 offen sc1")
    a("s_mov_b64 exec, 1")
    a(f"buffer_store_dwordx4 v[4:7], v3, {srd(SRD_WS)}, s5 offen offset:512 sc1")
    a("s_mov_b64 exec, -1")
    lds_inc(a, L_REC)
    stamp(a, 7)
    stamp_flush(a)
    a("s_endpgm")

    a.label("L_notattn")
    if PRIO:
        a("s_setprio 3")
    a("s_cmp_eq_u32 s3, 11")
    a("s_cbranch_scc1 L_comm")
    a("s_cmp_eq_u32 s3, 8")
    a("s_cbranch_scc1 L_w8")
    a("s_cmp_lt_u32 s2, 224")
    a("s_cbranch_scc1 L_ffn")
    a("s_waitcnt lgkmcnt(0)")
    a("s_barrier")
    a("s_endpgm")
    a.label("L_ffn")
    a("s_cmp_eq_u32 s3, 9")
    a("s_cselect_b32 s52, s28, s30")
    a("s_cselect_b32 s53, s29, s31")
    a(f"s_mov_b32 s54, {1024*3584*2}")
    a("s_mov_b32 s55, 0x00020000")
    a("s_lshr_b32 s8, s2, 3")
    a("s_and_b32 s9, s2, 7")
    a("s_lshl_b32 s10, s9, 8")
    ln_issue(a, 10)
    wjob_voff(a, 7168)
    a(f"s_mul_i32 s11, s9, {128*7168}")
    a("s_lshl_b32 s12, s8, 8")
    a("s_add_u32 s11, s11, s12")
    a("s_sub_u32 s13, s3, 8")
    a("s_lshl_b32 s13, s13, 15")
    a(f"s_add_u32 s13, s13, {L_WT}")
    def mid_ffn():
        a(f"s_add_u32 s{S_TAG}, s{S_TAG}, 1")
        a(f"s_waitcnt vmcnt({min(WPACE,32)})")
        stamp(a, 1)
        a("v_mov_b32 v160, v1")
        ln_compute(a)
        a("v_mov_b32 v1, v160")
        stamp(a, 2)
    def gate_ffn():
        if GATE_GU:
            lds_wait(a, L_QJ, 1)
    wjob_issue(a, 7168, 11, None, pace=WPACE, barrier=True, dyn=13, mid=mid_ffn, gate=gate_ffn, bar_at=FBAR)
    a("s_waitcnt vmcnt(0)")
    if STRIP == 1:
        a("s_endpgm")
    a("v_lshlrev_b32 v2, 4, v0")
    a("v_add_u32 v3, s13, v2")
    stamp(a, 3)
    wjob_consume_dyn(a)
    a("s_sub_u32 s12, s3, 9")
    a("s_mul_i32 s14, s12, 458752")
    a("s_mul_i32 s15, s9, 57344")
    a("s_add_u32 s14, s14, s15")
    a("s_lshl_b32 s15, s8, 9")
    a("s_add_u32 s14, s14, s15")
    a(f"s_add_u32 s14, s14, {GUP}")
    a("s_lshl_b32 s15, s8, 4")
    a("s_lshl_b32 s12, s12, 3")
    a("s_add_u32 s15, s15, s12")
    a("s_add_u32 s15, s15, s9")
    a("s_lshl_b32 s15, s15, 2")
    a(f"s_add_u32 s15, s15, {FGU}")
    wjob_store(a, 14, 14336, 15, flag=not NOPOLL)
    stamp(a, 4)
    if STRIP:
        a("s_endpgm")
    a("s_cmp_eq_u32 s3, 9")
    a("s_cbranch_scc1 L_down")
    stamp_flush(a)
    a("s_endpgm")

    a.label("L_down")
    a("s_lshr_b32 s8, s97, 3")
    a("s_and_b32 s9, s97, 7")
    mk_srd(a, SRD_W, 32, 3584*1024*2)
    a("s_lshl_b32 s12, s8, 6")
    a(f"s_add_u32 s12, s12, {FGU}")
    a("v_lshlrev_b32 v6, 2, v0")
    if NOPOLL:
        lds_wait(a, L_ISS, 8)
    else:
        poll_flags(a, 6, 12, 7, execmask="0xffff")
    stamp(a, 5)
    a("v_lshrrev_b32 v2, 4, v0")
    a("v_mul_u32_u24 v2, 14336, v2")
    a("v_and_b32 v3, 15, v0")
    a("v_lshl_add_u32 v2, v3, 4, v2")
    a("s_lshl_b32 s12, s8, 9")
    a(f"s_add_u32 s12, s12, {GUP}")
    G = 8
    def emit(fl):
        for mat in range(2):
            for sp in range(8):
                a(f"s_add_u32 s5, s12, {mat*458752 + sp*57344}")
                a(f"buffer_load_dwordx4 {vr(G+64*mat+8*sp)}, v2, {srd(SRD_WS)}, s5 offen {fl}")
                a(f"buffer_load_dwordx4 {vr(G+64*mat+8*sp+4)}, v2, {srd(SRD_WS)}, s5 offen offset:256 {fl}")
        for q in range(32):
            a(f"s_waitcnt vmcnt({31-q})")
            tag_check(a, G+4*q, 136, 137, 138, first=(q == 0))
    gather(a, emit, 136)
    for mat in range(2):
        for sp in range(1, 8):
            for e in range(8):
                a(f"v_add_f32 v{G+64*mat+e}, v{G+64*mat+e}, v{G+64*mat+8*sp+e}")
    c1 = 0.044715
    c2 = -2.0 * 0.7978845608028654 * 1.4426950408889634
    a(f"s_mov_b32 s12, {f32hex(c1)}")
    a(f"s_mov_b32 s13, {f32hex(c2)}")
    for e in range(8):
        g, u, t = G+e, G+64+e, 16+e
        rne(a, g, g)
        rne(a, u, u)
        a(f"v_mul_f32 v{t}, v{g}, v{g}")
        a(f"v_mul_f32 v{t}, v{t}, v{g}")
        a(f"v_fma_f32 v{t}, v{t}, s12, v{g}")
        a(f"v_mul_f32 v{t}, s13, v{t}")
        a(f"v_exp_f32 v{t}, v{t}")
        a("s_nop 0")
        a(f"v_add_f32 v{t}, 1.0, v{t}")
        a(f"v_rcp_f32 v{t}, v{t}")
        a("s_nop 0")
        a(f"v_mul_f32 v{t}, v{t}, v{g}")
        rne(a, t, t)
        a(f"v_mul_f32 v{t}, v{t}, v{u}")
    for q in range(4):
        a(f"v_cvt_pk_bf16_f32 v{24+q}, v{16+2*q}, v{17+2*q}")
    stamp(a, 6)
    af_via_lds(a, 24, L_AF + 1024)
    wjob_voff(a, 2048)
    lds_wait(a, L_GO, 1)
    a(f"s_mul_i32 s11, s8, {128*2048}")
    a("s_lshl_b32 s12, s9, 8")
    a("s_add_u32 s11, s11, s12")
    wjob_issue(a, 2048, 11, L_WT + 0x8000, pace=TPACE)
    a("s_waitcnt vmcnt(0)")
    stamp(a, 8)
    wjob_consume(a, L_WT + 0x8000)
    a("s_lshl_b32 s14, s9, 17")
    a("s_add_u32 s15, s8, 32")
    a("s_lshl_b32 s12, s15, 11")
    a("s_add_u32 s14, s14, s12")
    a(f"s_add_u32 s14, s14, {SP}")
    a("s_lshl_b32 s12, s9, 6")
    a("s_add_u32 s15, s15, s12")
    a("s_lshl_b32 s15, s15, 2")
    a(f"s_add_u32 s15, s15, {FS}")
    wjob_store(a, 14, 512, 15)
    stamp(a, 7)
    stamp_flush(a)
    a("s_endpgm")

    a.label("L_w8")
    mk_srd(a, SRD_W, 22, 1024*4096*2)
    a("s_lshr_b32 s8, s2, 3")
    a("s_and_b32 s9, s2, 7")
    a("s_lshl_b32 s10, s9, 8")
    ln_issue(a, 10)
    wjob_voff(a, 8192)
    a(f"s_mul_i32 s11, s9, {128*8192}")
    a("s_lshl_b32 s12, s8, 8")
    a("s_add_u32 s11, s11, s12")
    def mid_q():
        a(f"s_add_u32 s{S_TAG}, s{S_TAG}, 1")
        a(f"s_waitcnt vmcnt({min(QPACE,32)})")
        stamp(a, 1)
        ln_compute(a)
        stamp(a, 2)
    wjob_issue(a, 8192, 11, L_WT, pace=QPACE, barrier=True, mid=mid_q, bar_at=32)
    a("s_waitcnt vmcnt(0)")
    if GATE_GU:
        lds_inc(a, L_QJ)
    if STRIP == 1:
        a("s_endpgm")
    stamp(a, 3)
    wjob_consume(a, L_WT)
    a("s_lshl_b32 s14, s9, 16")
    a("s_lshl_b32 s15, s8, 9")
    a("s_add_u32 s14, s14, s15")
    a(f"s_add_u32 s14, s14, {QP}")
    a("s_lshl_b32 s15, s2, 2")
    a(f"s_add_u32 s15, s15, {FQ}")
    wjob_store(a, 14, 16384, 15, flag=not NOPOLL)
    if QWAIT:
        lds_inc(a, L_QJ)
    stamp(a, 4)
    if STRIP:
        a("s_endpgm")
    a("s_lshr_b32 s8, s96, 3")
    a("s_and_b32 s9, s96, 7")
    mk_srd(a, SRD_W, 24, 4096*1024*2)
    wjob_voff(a, 2048)
    a("s_lshl_b32 s12, s8, 16")
    a(f"s_add_u32 s12, s12, {OREC}")
    a("v_lshlrev_b32 v6, 10, v0")
    a("v_add_u32 v6, 512, v6")
    lds_wait(a, L_REC, 8)
    if not NOSYNC:
        lp = a.uniq("pa"); dn = a.uniq("pad")
        a(f"s_mov_b32 s{S_TMO}, 100000")
        a.label(lp)
        a(f"buffer_load_dwordx4 {vr(136)}, v6, {srd(SRD_WS)}, s12 offen sc1")
        a("s_waitcnt vmcnt(0)")
        a(f"v_cmp_eq_u32 vcc, s{S_TAG}, v138")
        a("s_nop 3")
        a("s_bcnt1_i32_b64 s4, vcc")
        a(f"s_cmp_ge_u32 s4, {THR}")
        a(f"s_cbranch_scc1 {dn}")
        a(f"s_sleep {PSLEEP}")
        a(f"s_sub_u32 s{S_TMO}, s{S_TMO}, 1")
        a(f"s_cmp_lg_u32 s{S_TMO}, 0")
        a(f"s_cbranch_scc1 {lp}")
        a.label(dn)
    stamp(a, 8)
    lds_inc(a, L_GO)
    a(f"s_mul_i32 s11, s8, {128*2048}")
    a("s_lshl_b32 s13, s9, 8")
    a("s_add_u32 s11, s11, s13")
    wjob_issue(a, 2048, 11, L_WT, pace=TPACE)
    poll_flags(a, 6, 12, 136, width=4, tagreg_idx=2)
    stamp(a, 5)
    a("v_mov_b32 v138, v136")
    row_reduce_max(a, 138)
    a("v_sub_f32 v136, v136, v138")
    a("v_exp_f32 v136, v136")
    a("s_nop 0")
    a("v_mul_f32 v137, v136, v137")
    row_reduce_add(a, 137)
    a("v_rcp_f32 v137, v137")
    a("s_nop 0")
    a("v_mul_f32 v136, v136, v137")
    a("v_lshrrev_b32 v2, 4, v0")
    a("v_lshlrev_b32 v2, 14, v2")
    a("v_and_b32 v3, 15, v0")
    a("v_lshl_add_u32 v2, v3, 5, v2")
    for s in range(16):
        a(f"v_mov_b32_dpp v{140+s}, v136 row_newbcast:{s} row_mask:0xf bank_mask:0xf")
    def emit(fl):
        for s in range(16):
            a(f"s_add_u32 s5, s12, {s*1024}")
            a(f"buffer_load_dwordx4 {vr(8+8*s)}, v2, {srd(SRD_WS)}, s5 offen {fl}")
            a(f"buffer_load_dwordx4 {vr(8+8*s+4)}, v2, {srd(SRD_WS)}, s5 offen offset:16 {fl}")
        for q in range(32):
            a(f"s_waitcnt vmcnt({31-q})")
            tag_check(a, 8+4*q, 136, 137, 138, first=(q == 0))
    gather(a, emit, 136)
    for e in range(8):
        a(f"v_mul_f32 v{8+e}, v{8+e}, v140")
    for s in range(1, 16):
        for e in range(8):
            a(f"v_fmac_f32 v{8+e}, v{8+8*s+e}, v{140+s}")
    for q in range(4):
        a(f"v_cvt_pk_bf16_f32 v{24+q}, v{8+2*q}, v{9+2*q}")
    stamp(a, 6)
    af_via_lds(a, 24, L_AF)
    wjob_consume(a, L_WT)
    a("s_lshl_b32 s14, s9, 17")
    a("s_lshl_b32 s12, s8, 11")
    a("s_add_u32 s14, s14, s12")
    a(f"s_add_u32 s14, s14, {SP}")
    a("s_lshl_b32 s12, s9, 6")
    a("s_add_u32 s15, s8, s12")
    a("s_lshl_b32 s15, s15, 2")
    a(f"s_add_u32 s15, s15, {FS}")
    wjob_store(a, 14, 512, 15)
    stamp(a, 7)
    stamp_flush(a)
    a("s_endpgm")

    a.label("L_comm")
    a("v_mov_b32 v2, 0")
    a("v_lshlrev_b32 v3, 2, v0")
    a("ds_write_b32 v3, v2")
    a("s_waitcnt lgkmcnt(0)")
    a("s_barrier")
    a(f"s_add_u32 s{S_TAG}, s{S_TAG}, 1")
    if STRIP in (1, 2):
        a("s_endpgm")
    a("s_lshr_b32 s8, s96, 4")
    a("s_and_b32 s8, s8, 3")
    a("s_lshr_b32 s9, s96, 6")
    a("s_lshl_b32 s12, s8, 8")
    a(f"s_add_u32 s12, s12, {FQ}")
    if NOPOLL:
        lds_wait(a, L_KISS, QTHR)
    else:
        if QWAIT:
            lds_wait(a, L_QJ, 1)
        a("v_lshlrev_b32 v6, 2, v0")
        poll_flags(a, 6, 12, 7)
    stamp(a, 1)
    if NOGATH:
        a("s_endpgm")
    a("s_lshl_b32 s12, s9, 14")
    a("s_lshl_b32 s13, s8, 12")
    a("s_add_u32 s12, s12, s13")
    a(f"s_add_u32 s12, s12, {QP}")
    a("v_lshlrev_b32 v2, 4, v0")
    def emit(fl):
        for sp in range(8):
            a(f"s_add_u32 s5, s12, {sp*65536}")
            for q in range(4):
                a(f"buffer_load_dwordx4 {vr(8+16*sp+4*q)}, v2, {srd(SRD_WS)}, s5 offen offset:{1024*q} {fl}")
        for q in range(32):
            a(f"s_waitcnt vmcnt({31-q})")
            tag_check(a, 8+4*q, 136, 137, 138, first=(q == 0))
    gather(a, emit, 136)
    for sp in range(1, 8):
        for e in range(16):
            a(f"v_add_f32 v{8+e}, v{8+e}, v{8+16*sp+e}")
    for q in range(8):
        a(f"v_cvt_pk_bf16_f32 v{24+q}, v{8+2*q}, v{9+2*q}")
    a("v_lshrrev_b32 v2, 5, v0")
    a("v_lshlrev_b32 v2, 8, v2")
    a("v_and_b32 v3, 15, v0")
    a("v_lshl_add_u32 v2, v3, 4, v2")
    a("v_bfe_u32 v3, v0, 4, 1")
    a("v_lshl_add_u32 v2, v3, 3, v2")
    for q in range(4):
        a(f"ds_write_b64 v2, v[{24+2*q}:{25+2*q}] offset:{L_QS + 512*q}")
    lds_inc(a, L_QRDY)
    stamp(a, 2)
    if STRIP:
        a("s_endpgm")
    a("s_cmp_lt_u32 s2, 32")
    a("s_cbranch_scc1 L_final")
    stamp_flush(a)
    a("s_endpgm")
    a.label("L_final")
    a("s_and_b32 s8, s2, 7")
    a("s_lshr_b32 s9, s2, 3")
    a("s_lshl_b32 s12, s8, 8")
    a(f"s_add_u32 s12, s12, {FS}")
    a("v_lshlrev_b32 v6, 2, v0")
    a("s_mov_b32 s10, -1")
    a("s_mov_b32 s11, 0x0fffffff")
    poll_flags(a, 6, 12, 7, execmask="s[10:11]")
    stamp(a, 3)
    a("v_and_b32 v3, 31, v0")
    a("v_and_b32 v4, 15, v0")
    a("v_lshlrev_b32 v4, 4, v4")
    a("v_bfe_u32 v5, v0, 4, 1")
    a("v_lshl_add_u32 v4, v5, 3, v4")
    a("s_lshl_b32 s13, s9, 11")
    a("s_lshl_b32 s14, s8, 8")
    a("s_add_u32 s13, s13, s14")
    a(f"buffer_load_dwordx2 v[140:141], v4, {srd(SRD_X)}, s13 offen")
    a("v_lshrrev_b32 v2, 5, v0")
    a("v_lshlrev_b32 v2, 16, v2")
    a("v_lshl_add_u32 v2, v3, 4, v2")
    a("s_lshl_b32 s12, s8, 17")
    a("s_lshl_b32 s14, s9, 9")
    a("s_add_u32 s12, s12, s14")
    a(f"s_add_u32 s12, s12, {SP}")
    tag_setup(a, 144)
    def emit(fl):
        for j in range(28, 32):
            for e in range(4):
                a(f"v_and_b32 v{8+4*j+e}, 0xff, v{144+e}")
        for j in range(32):
            if j == 28:
                a("s_mov_b32 exec_lo, -1"); a("s_mov_b32 exec_hi, 0")
            a(f"s_add_u32 s5, s12, {j*2048}")
            a(f"buffer_load_dwordx4 {vr(8+4*j)}, v2, {srd(SRD_WS)}, s5 offen {fl}")
        a("s_mov_b64 exec, -1")
        for q in range(32):
            a(f"s_waitcnt vmcnt({31-q})")
            tag_check(a, 8+4*q, 136, 137, 138, first=(q == 0))
    gather(a, emit, 136)
    for j in range(1, 32):
        for e in range(4):
            a(f"v_add_f32 v{8+e}, v{8+e}, v{8+4*j+e}")
    for e in range(4):
        a(f"v_mov_b32 v{12+e}, v{8+e}")
    a("s_nop 1")
    for e in range(4):
        a(f"v_permlane32_swap_b32 v{8+e}, v{12+e}")
    a("s_nop 1")
    a(f"s_mov_b32 s14, {f32hex(-1.4426950408889634)}")
    for e in range(4):
        s_, f_, t = 8+e, 12+e, 16+e
        rne(a, s_, s_)
        rne(a, f_, f_)
        a(f"v_mul_f32 v{t}, s14, v{f_}")
        a(f"v_exp_f32 v{t}, v{t}")
        a("s_nop 0")
        a(f"v_add_f32 v{t}, 1.0, v{t}")
        a(f"v_rcp_f32 v{t}, v{t}")
        a("s_nop 0")
        a(f"v_mul_f32 v{t}, v{t}, v{f_}")
        rne(a, t, t)
        a(f"v_mul_f32 v{t}, v{t}, v{s_}")
        rne(a, t, t)
        xr = 140 + e // 2
        if e % 2 == 0:
            a(f"v_lshlrev_b32 v{s_}, 16, v{xr}")
        else:
            a(f"v_and_b32 v{s_}, 0xffff0000, v{xr}")
        a(f"v_add_f32 v{t}, v{t}, v{s_}")
    a("v_cvt_pk_bf16_f32 v20, v16, v17")
    a("v_cvt_pk_bf16_f32 v21, v18, v19")
    a("s_mov_b32 exec_lo, -1"); a("s_mov_b32 exec_hi, 0")
    a(f"buffer_store_dwordx2 v[20:21], v4, {srd(SRD_OUT)}, s13 offen")
    stamp(a, 4)
    stamp_flush(a)
    a("s_mov_b64 exec, -1")
    a("s_cmp_lg_u32 s2, 0")
    a("s_cbranch_scc1 L_end")
    a("s_mov_b64 exec, 1")
    a("v_mov_b32 v2, 0")
    a(f"v_mov_b32 v3, s{S_TAG}")
    a(f"buffer_store_dword v3, v2, {srd(SRD_WS)}, 0 offen sc1")
    a.label("L_end")
    a("s_endpgm")

    out += a.l
    out += ['.section .rodata,"a"', ".p2align 6", f".amdhsa_kernel {NAME}",
            "  .amdhsa_next_free_vgpr 168", "  .amdhsa_next_free_sgpr 100", "  .amdhsa_accum_offset 168",
            "  .amdhsa_group_segment_fixed_size 0", "  .amdhsa_kernarg_size 96", "  .amdhsa_user_sgpr_count 2",
            "  .amdhsa_user_sgpr_kernarg_segment_ptr 1", "  .amdhsa_system_sgpr_workgroup_id_x 1",
            ".end_amdhsa_kernel"]
    open(path, "w").write("\n".join(out) + "\n")

def wjob_consume_dyn(a):
    def rd(tb, T):
        for i in range(8):
            a(f"ds_read_b128 {vr(T+4*i)}, v3 offset:{(tb*8+i)*1024}")
    rd(0, W_T0)
    for tb in range(4):
        T = W_T0 if tb % 2 == 0 else W_T1
        if tb < 3:
            rd(tb+1, W_T1 if tb % 2 == 0 else W_T0)
            a("s_waitcnt lgkmcnt(8)")
        else:
            a("s_waitcnt lgkmcnt(0)")
        for w in range(4):
            TB = W_TB + 8*(w % 2)
            for p in range(4):
                a(f"v_perm_b32 v{TB+p}, v{T+4*(2*p+1)+w}, v{T+4*(2*p)+w}, s{S_SELLO}")
            for p in range(4):
                a(f"v_perm_b32 v{TB+4+p}, v{T+4*(2*p+1)+w}, v{T+4*(2*p)+w}, s{S_SELHI}")
            a("s_nop 1")
            for h in range(2):
                t = 2*w + h
                c = "0" if tb == 0 else vr(W_ACC+4*t)
                a(f"v_mfma_f32_16x16x32_bf16 {vr(W_ACC+4*t)}, {vr(W_AF+4*tb)}, {vr(TB+4*h)}, {c}")

if __name__ == "__main__":
    depth = int(sys.argv[2]) if len(sys.argv) > 2 else 8
    STAMPS = "stamps" in sys.argv
    for x in sys.argv[3:]:
        if "=" in x:
            k, v = x.split("=")
            globals()[k] = int(v) if v.lstrip('-').isdigit() else v.replace('_', ' ').strip()
    gen(sys.argv[1], depth)
```

```python
import struct, sys

NAME = "recurrent_scan__gqa_block_cached__glu_gated_geglu__decode_kernel"

def f32hex(x):
    return "0x%08x" % struct.unpack("<I", struct.pack("<f", x))[0]

EPOCH = 0
FQ = 0x1000
FGU = 0x2000
FS = 0x3000
QP = 0x100000
GUP = 0x200000
OREC = 0x400000
SP = 0x800000

L_QRDY = 0
L_OCNT = 4
L_ISS = 8
L_QJ = 12
L_KISS = 24
L_GO = 16
L_REC = 20
L_ML = 0x100
L_QS = 0x400
L_AF = 0xC00
L_OP = 0x2000
L_WT = 0xA000
LDS_BYTES = 0xA000 + 3 * 0x8000

S_TAG = 40
S_TMO = 41
SRD_K, SRD_V, SRD_W, SRD_WS, SRD_X, SRD_OUT = 44, 48, 52, 56, 60, 64
S_SELLO, S_SELHI, S_SCALE, S_LOG2E = 68, 69, 70, 71

class A:
    def __init__(self):
        self.l = []
        self.n = 0
    def __call__(self, s):
        self.l.append("    " + s)
    def label(self, s):
        self.l.append(s + ":")
    def uniq(self, p):
        self.n += 1
        return f"L_{p}_{self.n}"

def vr(b, n=4):
    return f"v[{b}:{b+n-1}]"

def srd(b):
    return f"s[{b}:{b+3}]"

def mk_srd(a, d, ptr, nbytes):
    a(f"s_mov_b32 s{d}, s{ptr}")
    a(f"s_mov_b32 s{d+1}, s{ptr+1}")
    a(f"s_mov_b32 s{d+2}, {nbytes}")
    a(f"s_mov_b32 s{d+3}, 0x00020000")

def lds_wait(a, addr, n, vtmp=2, vz=3):
    lp = a.uniq("lw"); dn = a.uniq("lwd")
    a(f"s_mov_b32 s{S_TMO}, 400000")
    a(f"v_mov_b32 v{vz}, 0")
    a.label(lp)
    a(f"ds_read_b32 v{vtmp}, v{vz} offset:{addr}")
    a("s_waitcnt lgkmcnt(0)")
    a(f"v_readfirstlane_b32 s4, v{vtmp}")
    a("s_nop 3")
    a(f"s_cmp_ge_u32 s4, {n}")
    a(f"s_cbranch_scc1 {dn}")
    a("s_sleep 1")
    a(f"s_sub_u32 s{S_TMO}, s{S_TMO}, 1")
    a(f"s_cmp_lg_u32 s{S_TMO}, 0")
    a(f"s_cbranch_scc1 {lp}")
    a.label(dn)

def lds_inc(a, addr, v1=2, v2=3):
    a("s_mov_b64 exec, 1")
    a(f"v_mov_b32 v{v1}, 0")
    a(f"v_mov_b32 v{v2}, 1")
    a(f"ds_add_u32 v{v1}, v{v2} offset:{addr}")
    a("s_mov_b64 exec, -1")

def poll_flags(a, voff, soff_reg, vdst, width=1, tagreg_idx=0, execmask=None):
    lp = a.uniq("pl"); dn = a.uniq("pld")
    if NOSYNC:
        a("s_waitcnt vmcnt(0)")
        return
    a(f"s_mov_b32 s{S_TMO}, 100000")
    if execmask is not None:
        a(f"s_mov_b64 exec, {execmask}")
    a.label(lp)
    if width == 1:
        a(f"buffer_load_dword v{vdst}, v{voff}, {srd(SRD_WS)}, s{soff_reg} offen sc1")
    else:
        a(f"buffer_load_dwordx4 {vr(vdst)}, v{voff}, {srd(SRD_WS)}, s{soff_reg} offen sc1")
    a("s_waitcnt vmcnt(0)")
    a(f"v_cmp_ne_u32 vcc, s{S_TAG}, v{vdst+tagreg_idx}")
    a("s_nop 3")
    a("s_cmp_eq_u64 vcc, 0")
    a(f"s_cbranch_scc1 {dn}")
    a(f"s_sleep {PSLEEP}")
    a(f"s_sub_u32 s{S_TMO}, s{S_TMO}, 1")
    a(f"s_cmp_lg_u32 s{S_TMO}, 0")
    a(f"s_cbranch_scc1 {lp}")
    a.label(dn)
    if execmask is not None:
        a("s_mov_b64 exec, -1")

STAMPS = False
WPACE = 64
F128 = 0
FDIRECT = 0
QTHR = 8
NOPOLL = 0
QTRIG = 16
RSLEEP = 8
STF = 'sc1'
NOFLAG = 0
NOGATH = 0
THR = 32
QWAIT = 0
VDEPTH = 4
VFROM = 16
STRIP = 0
TLATE = 0
L2G = 1
FBAR = 2
PRIO = 0
ABAR = 2
GATE_GU = 0
NOSYNC = 0
PSLEEP = 2
QPACE = 64
TPACE = 64
STAMP_BASE = 0xF00000
def stamp(a, idx):
    if not STAMPS: return
    a("s_memrealtime s[90:91]")
    a("s_waitcnt lgkmcnt(0)")
    a(f"s_mov_b32 s{72+idx}, s90")

def stamp_flush(a):
    if not STAMPS: return
    a("s_mov_b64 exec, 1")
    a("s_lshl_b32 s92, s2, 10")
    a("s_lshl_b32 s93, s3, 6")
    a("s_add_u32 s92, s92, s93")
    a(f"s_add_u32 s92, s92, {STAMP_BASE}")
    a("v_mov_b32 v1, 0")
    for q in range(4):
        for e in range(4):
            a(f"v_mov_b32 v{8+4*q+e}, s{72+4*q+e}")
        a(f"buffer_store_dwordx4 v[{8+4*q}:{11+4*q}], v1, {srd(SRD_WS)}, s92 offen offset:{16*q}")

S_MFF, S_PA, S_PB = 42, 43, 88
def tag_setup(a, vt):
    for i in range(4):
        a(f"v_mov_b32 v{vt+i}, s{S_TAG}")
        if i:
            a(f"v_lshrrev_b32 v{vt+i}, {8*i}, v{vt+i}")

def tag_apply(a, R, vt):
    for i in range(4):
        a(f"v_bfi_b32 v{R+i}, s{S_MFF}, v{vt+i}, v{R+i}")

def tag_check(a, R, acc, t1, t2, first=False):
    a(f"v_perm_b32 v{t1}, v{R+1}, v{R}, s{S_PA}")
    a(f"v_perm_b32 v{t2}, v{R+3}, v{R+2}, s{S_PB}")
    a(f"v_or_b32 v{t1}, v{t1}, v{t2}")
    if first:
        a(f"v_xor_b32 v{acc}, s{S_TAG}, v{t1}")
    else:
        a(f"v_xor_b32 v{t1}, s{S_TAG}, v{t1}")
        a(f"v_or_b32 v{acc}, v{acc}, v{t1}")

def gather(a, emit, acc):
    lp = a.uniq("gr"); dn = a.uniq("grd")
    emit("" if L2G else "sc1")
    if NOSYNC: return
    a(f"v_cmp_ne_u32 vcc, 0, v{acc}")
    a("s_nop 3")
    a("s_cmp_eq_u64 vcc, 0")
    a(f"s_cbranch_scc1 {dn}")
    a(f"s_mov_b32 s{S_TMO}, 100000")
    a.label(lp)
    emit("sc1")
    a(f"v_cmp_ne_u32 vcc, 0, v{acc}")
    a("s_nop 3")
    a("s_cmp_eq_u64 vcc, 0")
    a(f"s_cbranch_scc1 {dn}")
    a(f"s_sleep {RSLEEP}")
    a(f"s_sub_u32 s{S_TMO}, s{S_TMO}, 1")
    a(f"s_cmp_lg_u32 s{S_TMO}, 0")
    a(f"s_cbranch_scc1 {lp}")
    a.label(dn)

def gather_retry_begin(a):
    lp = a.uniq("gr")
    a(f"s_mov_b32 s{S_TMO}, 100000")
    a.label(lp)
    return lp

def gather_retry_end(a, lp, acc):
    dn = a.uniq("grd")
    if NOSYNC: return
    a(f"v_cmp_ne_u32 vcc, 0, v{acc}")
    a("s_nop 3")
    a("s_cmp_eq_u64 vcc, 0")
    a(f"s_cbranch_scc1 {dn}")
    a("s_sleep 1")
    a(f"s_sub_u32 s{S_TMO}, s{S_TMO}, 1")
    a(f"s_cmp_lg_u32 s{S_TMO}, 0")
    a(f"s_cbranch_scc1 {lp}")
    a.label(dn)

def rne(a, dst, src):
    a(f"v_cvt_pk_bf16_f32 v{dst}, v{src}, v{src}")
    a(f"v_lshlrev_b32 v{dst}, 16, v{dst}")

def row_reduce_add(a, v):
    for r in (8, 4, 2, 1):
        a("s_nop 1")
        a(f"v_add_f32_dpp v{v}, v{v}, v{v} row_ror:{r} row_mask:0xf bank_mask:0xf")

def row_reduce_max(a, v):
    for r in (8, 4, 2, 1):
        a("s_nop 1")
        a(f"v_max_f32_dpp v{v}, v{v}, v{v} row_ror:{r} row_mask:0xf bank_mask:0xf")

def xg_reduce(a, v, t, op):
    a(f"v_mov_b32 v{t}, v{v}")
    a("s_nop 1")
    a(f"v_permlane32_swap_b32 v{v}, v{t}")
    a("s_nop 1")
    a(f"{op} v{v}, v{v}, v{t}")
    a(f"v_mov_b32 v{t}, v{v}")
    a("s_nop 1")
    a(f"v_permlane16_swap_b32 v{v}, v{t}")
    a("s_nop 1")
    a(f"{op} v{v}, v{v}, v{t}")

W_T0, W_T1, W_ACC, W_TB, W_AF, W_M2 = 8, 40, 72, 104, 120, 136

def wjob_issue(a, rs, s_base, lds_slot, pace=64, barrier=False, dyn=None, mid=None, gate=None, bar_at=2):
    n = 0
    done = False
    for tb in range(4):
        for i in range(8):
            if barrier and n == bar_at:
                a("s_waitcnt lgkmcnt(0)")
                a("s_barrier")
                if gate: gate()
            if n == pace:
                if mid: mid()
                done = True
            if n >= pace:
                a(f"s_waitcnt vmcnt({pace-1})")
            a(f"s_add_u32 s5, s{s_base}, {(32*tb+i)*rs}")
            if dyn is None:
                a(f"s_mov_b32 m0, {lds_slot + (tb*8+i)*1024}")
            else:
                a(f"s_add_u32 s14, s{dyn}, {(tb*8+i)*1024}")
                a("s_mov_b32 m0, s14")
            a("s_nop 0")
            a(f"buffer_load_dwordx4 v1, {srd(SRD_W)}, s5 offen nt lds")
            n += 1
    if barrier and bar_at >= 32:
        a("s_waitcnt lgkmcnt(0)")
        a("s_barrier")
    if not done:
        if mid: mid()

def wjob_voff(a, rs):
    a("v_lshrrev_b32 v2, 4, v0")
    a(f"s_mov_b32 s5, {8*rs}")
    a("v_mul_lo_u32 v2, v2, s5")
    a("v_and_b32 v1, 15, v0")
    a("v_lshlrev_b32 v1, 4, v1")
    a("v_add_u32 v1, v1, v2")

def wjob_consume(a, lds_slot):
    a("v_lshlrev_b32 v2, 4, v0")
    def rd(tb, T):
        for i in range(8):
            off = lds_slot + (tb*8+i)*1024
            a(f"ds_read_b128 {vr(T+4*i)}, v3 offset:{(tb*8+i)*1024}")
    a(f"v_add_u32 v3, {lds_slot}, v2")
    rd(0, W_T0)
    for tb in range(4):
        T = W_T0 if tb % 2 == 0 else W_T1
        if tb < 3:
            rd(tb+1, W_T1 if tb % 2 == 0 else W_T0)
            a("s_waitcnt lgkmcnt(8)")
        else:
            a("s_waitcnt lgkmcnt(0)")
        for w in range(4):
            TB = W_TB + 8*(w % 2)
            for p in range(4):
                a(f"v_perm_b32 v{TB+p}, v{T+4*(2*p+1)+w}, v{T+4*(2*p)+w}, s{S_SELLO}")
            for p in range(4):
                a(f"v_perm_b32 v{TB+4+p}, v{T+4*(2*p+1)+w}, v{T+4*(2*p)+w}, s{S_SELHI}")
            a("s_nop 1")
            for h in range(2):
                t = 2*w + h
                c = "0" if tb == 0 else vr(W_ACC+4*t)
                a(f"v_mfma_f32_16x16x32_bf16 {vr(W_ACC+4*t)}, {vr(W_AF+4*tb)}, {vr(TB+4*h)}, {c}")

def wjob_store(a, s_out, mstride, s_flag, flag=True):
    tag_setup(a, W_M2)
    a("s_nop 7")
    R = W_T0
    for m in range(4):
        for t in range(8):
            a(f"v_bfi_b32 v{R+8*m+t}, s{S_MFF}, v{W_M2+(t&3)}, v{W_ACC+4*t+m}")
    a("v_lshlrev_b32 v2, 4, v0")
    a("s_mov_b64 exec, 0xffff")
    for m in range(4):
        a(f"s_add_u32 s5, s{s_out}, {m*mstride}")
        a(f"buffer_store_dwordx4 {vr(R+8*m)}, v2, {srd(SRD_WS)}, s5 offen {STF}")
        a(f"buffer_store_dwordx4 {vr(R+8*m+4)}, v2, {srd(SRD_WS)}, s5 offen offset:256 {STF}")
    a("s_mov_b64 exec, 1")
    a("v_mov_b32 v2, 0")
    if flag and not NOFLAG:
        a(f"buffer_store_dword v{W_M2}, v2, {srd(SRD_WS)}, s{s_flag} offen {STF}")
    a("s_mov_b64 exec, -1")

def ln_issue(a, s_r0x2):
    a("v_lshrrev_b32 v2, 4, v0")
    a("v_lshlrev_b32 v2, 11, v2")
    a("v_and_b32 v3, 15, v0")
    a("v_lshlrev_b32 v3, 7, v3")
    a("v_add_u32 v2, v2, v3")
    for k in range(8):
        a(f"buffer_load_dwordx4 {vr(W_T0+4*k)}, v2, {srd(SRD_X)}, 0 offen offset:{16*k}")
    a("v_and_b32 v3, 3, v0")
    a("v_lshlrev_b32 v3, 11, v3")
    a("v_lshrrev_b32 v4, 4, v0")
    a("v_lshlrev_b32 v4, 4, v4")
    a("v_add_u32 v3, v3, v4")
    for tb in range(4):
        a(f"buffer_load_dwordx4 {vr(W_AF+4*tb)}, v3, {srd(SRD_X)}, s{s_r0x2} offen offset:{64*tb}")

def ln_compute(a):
    X = W_T0
    a("v_mov_b32 v2, 0")
    a("v_mov_b32 v3, 0")
    for r in range(32):
        a(f"v_lshlrev_b32 v4, 16, v{X+r}")
        a(f"v_and_b32 v5, 0xffff0000, v{X+r}")
        a("v_add_f32 v2, v2, v4")
        a("v_add_f32 v3, v3, v5")
    a("v_add_f32 v2, v2, v3")
    row_reduce_add(a, 2)
    a(f"v_mul_f32 v2, {f32hex(1.0/1024)}, v2")
    a("v_mov_b32 v3, 0")
    a("v_mov_b32 v6, 0")
    for r in range(32):
        a(f"v_lshlrev_b32 v4, 16, v{X+r}")
        a(f"v_and_b32 v5, 0xffff0000, v{X+r}")
        a("v_sub_f32 v4, v4, v2")
        a("v_sub_f32 v5, v5, v2")
        a("v_fmac_f32 v3, v4, v4")
        a("v_fmac_f32 v6, v5, v5")
    a("v_add_f32 v3, v3, v6")
    row_reduce_add(a, 3)
    a(f"v_mul_f32 v3, {f32hex(1.0/1024)}, v3")
    rne(a, 2, 2)
    rne(a, 3, 3)
    a(f"v_add_f32 v3, {f32hex(1e-5)}, v3")
    rne(a, 3, 3)
    a("v_sqrt_f32 v3, v3")
    a("s_nop 0")
    rne(a, 3, 3)
    a("v_and_b32 v4, 3, v0")
    a("v_lshlrev_b32 v4, 6, v4")
    a("ds_bpermute_b32 v2, v4, v2")
    a("ds_bpermute_b32 v3, v4, v3")
    a("s_waitcnt lgkmcnt(0)")
    a("v_rcp_f32 v4, v3")
    a("s_nop 0")
    for r in range(16):
        R = W_AF + r
        a(f"v_lshlrev_b32 v5, 16, v{R}")
        a(f"v_and_b32 v6, 0xffff0000, v{R}")
        a("v_sub_f32 v5, v5, v2")
        a("v_sub_f32 v6, v6, v2")
        a("v_cvt_pk_bf16_f32 v7, v5, v6")
        a("v_lshlrev_b32 v5, 16, v7")
        a("v_and_b32 v6, 0xffff0000, v7")
        a(f"v_mul_f32 v{W_M2}, v5, v4")
        a(f"v_mul_f32 v{W_M2+1}, v6, v4")
        a(f"v_fma_f32 v5, -v{W_M2}, v3, v5")
        a(f"v_fma_f32 v6, -v{W_M2+1}, v3, v6")
        a(f"v_fma_f32 v{W_M2}, v5, v4, v{W_M2}")
        a(f"v_fma_f32 v{W_M2+1}, v6, v4, v{W_M2+1}")
        a(f"v_cvt_pk_bf16_f32 v{R}, v{W_M2}, v{W_M2+1}")

def af_via_lds(a, vpk, lds_af):
    a("v_lshlrev_b32 v2, 4, v0")
    a(f"ds_write_b128 v2, {vr(vpk)} offset:{lds_af}")
    a("v_and_b32 v2, 3, v0")
    a("v_lshlrev_b32 v2, 8, v2")
    a("v_lshrrev_b32 v3, 4, v0")
    a("v_lshlrev_b32 v3, 4, v3")
    a("v_add_u32 v2, v2, v3")
    a("s_waitcnt lgkmcnt(0)")
    for tb in range(4):
        a(f"ds_read_b128 {vr(W_AF+4*tb)}, v2 offset:{lds_af + 64*tb}")
    a("s_waitcnt lgkmcnt(0)")

def final32(a):
    a("s_and_b32 s8, s2, 7")
    a("s_lshr_b32 s9, s2, 3")
    a("s_lshl_b32 s12, s8, 8")
    a(f"s_add_u32 s12, s12, {FS}")
    a("v_lshlrev_b32 v6, 2, v0")
    if FDIRECT:
        lds_wait(a, L_REC, 8)
    else:
        a("s_mov_b32 s10, -1")
        a("s_mov_b32 s11, 0x0fffffff")
        poll_flags(a, 6, 12, 7, execmask="s[10:11]")
    stamp(a, 3)
    a("v_and_b32 v3, 31, v0")
    a("v_and_b32 v4, 15, v0")
    a("v_lshlrev_b32 v4, 4, v4")
    a("v_bfe_u32 v5, v0, 4, 1")
    a("v_lshl_add_u32 v4, v5, 3, v4")
    a("s_lshl_b32 s13, s9, 11")
    a("s_lshl_b32 s14, s8, 8")
    a("s_add_u32 s13, s13, s14")
    a(f"buffer_load_dwordx2 v[140:141], v4, {srd(SRD_X)}, s13 offen")
    a("v_lshrrev_b32 v2, 5, v0")
    a("v_lshlrev_b32 v2, 16, v2")
    a("v_lshl_add_u32 v2, v3, 4, v2")
    a("s_lshl_b32 s12, s8, 17")
    a("s_lshl_b32 s14, s9, 9")
    a("s_add_u32 s12, s12, s14")
    a(f"s_add_u32 s12, s12, {SP}")
    tag_setup(a, 144)
    def emit(fl):
        for j in range(28, 32):
            for e in range(4):
                a(f"v_and_b32 v{8+4*j+e}, 0xff, v{144+e}")
        for j in range(32):
            if j == 28:
                a("s_mov_b32 exec_lo, -1"); a("s_mov_b32 exec_hi, 0")
            a(f"s_add_u32 s5, s12, {j*2048}")
            a(f"buffer_load_dwordx4 {vr(8+4*j)}, v2, {srd(SRD_WS)}, s5 offen {fl}")
        a("s_mov_b64 exec, -1")
        for q in range(32):
            a(f"s_waitcnt vmcnt({31-q})")
            tag_check(a, 8+4*q, 136, 137, 138, first=(q == 0))
    gather(a, emit, 136)
    for j in range(1, 32):
        for e in range(4):
            a(f"v_add_f32 v{8+e}, v{8+e}, v{8+4*j+e}")
    for e in range(4):
        a(f"v_mov_b32 v{12+e}, v{8+e}")
    a("s_nop 1")
    for e in range(4):
        a(f"v_permlane32_swap_b32 v{8+e}, v{12+e}")
    a("s_nop 1")
    a(f"s_mov_b32 s14, {f32hex(-1.4426950408889634)}")
    for e in range(4):
        s_, f_, t = 8+e, 12+e, 16+e
        rne(a, s_, s_)
        rne(a, f_, f_)
        a(f"v_mul_f32 v{t}, s14, v{f_}")
        a(f"v_exp_f32 v{t}, v{t}")
        a("s_nop 0")
        a(f"v_add_f32 v{t}, 1.0, v{t}")
        a(f"v_rcp_f32 v{t}, v{t}")
        a("s_nop 0")
        a(f"v_mul_f32 v{t}, v{t}, v{f_}")
        rne(a, t, t)
        a(f"v_mul_f32 v{t}, v{t}, v{s_}")
        rne(a, t, t)
        xr = 140 + e // 2
        if e % 2 == 0:
            a(f"v_lshlrev_b32 v{s_}, 16, v{xr}")
        else:
            a(f"v_and_b32 v{s_}, 0xffff0000, v{xr}")
        a(f"v_add_f32 v{t}, v{t}, v{s_}")
    a("v_cvt_pk_bf16_f32 v20, v16, v17")
    a("v_cvt_pk_bf16_f32 v21, v18, v19")
    a("s_mov_b32 exec_lo, -1"); a("s_mov_b32 exec_hi, 0")
    a(f"buffer_store_dwordx2 v[20:21], v4, {srd(SRD_OUT)}, s13 offen")
    stamp(a, 4)
    stamp_flush(a)

def final128(a):
    a("s_and_b32 s8, s2, 7")
    a("s_lshr_b32 s9, s2, 3")
    a("s_and_b32 s9, s9, 3")
    a("s_lshr_b32 s10, s2, 5")
    lds_wait(a, L_REC, 8)
    stamp(a, 3)
    a("v_and_b32 v3, 7, v0")
    a("s_lshl_b32 s11, s10, 3")
    a("v_add_u32 v3, s11, v3")
    a("v_and_b32 v4, 15, v3")
    a("v_lshlrev_b32 v4, 4, v4")
    a("v_lshrrev_b32 v5, 4, v3")
    a("v_lshl_add_u32 v4, v5, 3, v4")
    a("s_lshl_b32 s13, s9, 11")
    a("s_lshl_b32 s14, s8, 8")
    a("s_add_u32 s13, s13, s14")
    a(f"buffer_load_dwordx2 v[140:141], v4, {srd(SRD_X)}, s13 offen")
    a("v_lshrrev_b32 v2, 3, v0")
    a("v_lshlrev_b32 v2, 11, v2")
    a("v_lshl_add_u32 v2, v3, 4, v2")
    a("s_lshl_b32 s12, s8, 17")
    a("s_lshl_b32 s14, s9, 9")
    a("s_add_u32 s12, s12, s14")
    a(f"s_add_u32 s12, s12, {SP}")
    tag_setup(a, 144)
    def emit(fl):
        for e in range(4):
            a(f"v_and_b32 v{8+28+e}, 0xff, v{144+e}")
        for i in range(8):
            if i == 7:
                a("s_mov_b32 exec_lo, -1"); a("s_mov_b32 exec_hi, 0")
            a(f"s_add_u32 s5, s12, {i*8*2048}")
            a(f"buffer_load_dwordx4 {vr(8+4*i)}, v2, {srd(SRD_WS)}, s5 offen {fl}")
        a("s_mov_b64 exec, -1")
        for q in range(8):
            a(f"s_waitcnt vmcnt({7-q})")
            tag_check(a, 8+4*q, 136, 137, 138, first=(q == 0))
    gather(a, emit, 136)
    for e in range(4):
        a(f"v_add_f32 v{8+e}, v{8+e}, v{12+e}")
        a(f"v_add_f32 v{16+e}, v{16+e}, v{20+e}")
        a(f"v_add_f32 v{24+e}, v{24+e}, v{28+e}")
        a(f"v_add_f32 v{32+e}, v{32+e}, v{36+e}")
    for e in range(4):
        a(f"v_add_f32 v{8+e}, v{8+e}, v{16+e}")
        a(f"v_add_f32 v{12+e}, v{24+e}, v{32+e}")
    a("s_nop 1")
    for e in range(8):
        a(f"v_add_f32_dpp v{8+e}, v{8+e}, v{8+e} row_ror:8 row_mask:0xf bank_mask:0xf")
    for e in range(8):
        a(f"v_mov_b32 v{40+e}, v{8+e}")
    a("s_nop 1")
    for e in range(8):
        a(f"v_permlane32_swap_b32 v{8+e}, v{40+e}")
    a("s_nop 1")
    for e in range(8):
        a(f"v_add_f32 v{8+e}, v{8+e}, v{40+e}")
    for e in range(8):
        a(f"v_mov_b32 v{40+e}, v{8+e}")
    a("s_nop 1")
    for e in range(8):
        a(f"v_permlane16_swap_b32 v{8+e}, v{40+e}")
    a("s_nop 1")
    for e in range(8):
        a(f"v_add_f32 v{8+e}, v{8+e}, v{40+e}")
    a(f"s_mov_b32 s14, {f32hex(-1.4426950408889634)}")
    for e in range(4):
        s_, f_, t = 8+e, 12+e, 16+e
        rne(a, s_, s_)
        rne(a, f_, f_)
        a(f"v_mul_f32 v{t}, s14, v{f_}")
        a(f"v_exp_f32 v{t}, v{t}")
        a("s_nop 0")
        a(f"v_add_f32 v{t}, 1.0, v{t}")
        a(f"v_rcp_f32 v{t}, v{t}")
        a("s_nop 0")
        a(f"v_mul_f32 v{t}, v{t}, v{f_}")
        rne(a, t, t)
        a(f"v_mul_f32 v{t}, v{t}, v{s_}")
        rne(a, t, t)
        xr = 140 + e // 2
        if e % 2 == 0:
            a(f"v_lshlrev_b32 v{s_}, 16, v{xr}")
        else:
            a(f"v_and_b32 v{s_}, 0xffff0000, v{xr}")
        a(f"v_add_f32 v{t}, v{t}, v{s_}")
    a("v_cvt_pk_bf16_f32 v20, v16, v17")
    a("v_cvt_pk_bf16_f32 v21, v18, v19")
    a("s_mov_b64 exec, 0xff")
    a(f"buffer_store_dwordx2 v[20:21], v4, {srd(SRD_OUT)}, s13 offen")
    stamp(a, 4)
    stamp_flush(a)

def gen(path, depth=8):
    a = A()
    hdr = open("recurrent_scan__gqa_block_cached__glu_gated_geglu__decode.s.ref").read().split("\n")
    top = [l for l in hdr if l.startswith(";") and "@launch" not in l]
    out = top + [f"; @launch grid=(256,1,1) block=(768,1,1) lds={LDS_BYTES}"]
    out += ['.amdgcn_target "amdgcn-amd-amdhsa--gfx950"', ".text", f".globl {NAME}", ".p2align 8",
            f".type {NAME},@function", f"{NAME}:"]
    a("s_cmp_ge_u32 s2, 256")
    a("s_cbranch_scc1 L_end")
    a("s_load_dwordx16 s[16:31], s[0:1], 0")
    a("s_load_dwordx8 s[32:39], s[0:1], 64")
    a("v_lshrrev_b32 v1, 6, v0")
    a("v_and_b32 v0, 63, v0")
    a("s_nop 0")
    a("v_readfirstlane_b32 s3, v1")
    a("s_and_b32 s4, s2, 7")
    a("s_lshr_b32 s5, s2, 3")
    a("s_lshl_b32 s96, s4, 5")
    a("s_add_u32 s96, s96, s5")
    a("s_mul_i32 s97, s4, 28")
    a("s_add_u32 s97, s97, s5")
    a(f"s_mov_b32 s{S_SELLO}, 0x05040100")
    a(f"s_mov_b32 s{S_SELHI}, 0x07060302")
    a(f"s_mov_b32 s{S_SCALE}, {f32hex(128 ** -0.5)}")
    a(f"s_mov_b32 s{S_LOG2E}, {f32hex(1.4426950408889634)}")
    a(f"s_mov_b32 s{S_MFF}, 0xff")
    a(f"s_mov_b32 s{S_PA}, 0x0c0c0400")
    a(f"s_mov_b32 s{S_PB}, 0x04000c0c")
    a("s_waitcnt lgkmcnt(0)")
    a(f"s_load_dword s{S_TAG}, s[38:39], {EPOCH}")
    mk_srd(a, SRD_K, 18, 0x2000000)
    mk_srd(a, SRD_V, 20, 0x2000000)
    mk_srd(a, SRD_WS, 38, 0x10000000)
    mk_srd(a, SRD_X, 16, 8192)
    mk_srd(a, SRD_OUT, 34, 8192)
    if STAMPS:
        for i in range(16): a(f"s_mov_b32 s{72+i}, 0")
    stamp(a, 0)
    a("s_cmp_ge_u32 s3, 8")
    a("s_cbranch_scc1 L_notattn")

    K0, V0, Q0, S0 = 8, 72, 136, 152
    a("s_lshl_b32 s6, s96, 17")
    a("s_lshl_b32 s5, s3, 14")
    a("s_add_u32 s6, s6, s5")
    a("v_and_b32 v2, 15, v0")
    a("v_lshrrev_b32 v3, 4, v0")
    a("v_lshlrev_b32 v4, 8, v2")
    a("v_lshl_add_u32 v4, v3, 4, v4")
    a("v_lshlrev_b32 v5, 10, v3")
    a("v_lshl_add_u32 v5, v2, 4, v5")
    loads = []
    for kt in range(4):
        for c in range(4):
            loads.append((SRD_K, 4, K0+16*kt+4*c, kt*4096, c*64))
    for u in range(2):
        for i in range(8):
            loads.append((SRD_V, 5, V0+32*u+4*i, u*8192+(i >> 2)*4096, (i & 3)*256))
    for n, (sr, vo, dst, so, io) in enumerate(loads):
        if n == ABAR:
            a("s_waitcnt lgkmcnt(0)")
            a("s_barrier")
        dd = depth if n < VFROM else VDEPTH
        if n >= dd:
            a(f"s_waitcnt vmcnt({dd-1})")
        a(f"s_add_u32 s7, s6, {so}")
        a(f"buffer_load_dwordx4 {vr(dst)}, v{vo}, {srd(sr)}, s7 offen offset:{io} nt")
        if NOPOLL and n == QTRIG:
            lds_inc(a, L_KISS)
    a(f"s_add_u32 s{S_TAG}, s{S_TAG}, 1")
    stamp(a, 1)
    if STRIP:
        a("s_waitcnt vmcnt(0)")
        stamp(a, 5)
        stamp_flush(a)
        a("s_endpgm")
    lds_inc(a, L_ISS)
    lds_wait(a, L_QRDY, 1)
    stamp(a, 2)
    a("v_and_b32 v2, 7, v0")
    a("v_lshlrev_b32 v2, 8, v2")
    a("v_lshrrev_b32 v3, 4, v0")
    a("v_lshl_add_u32 v2, v3, 4, v2")
    for c in range(4):
        a(f"ds_read_b128 {vr(Q0+4*c)}, v2 offset:{L_QS + 64*c}")
    a("s_waitcnt vmcnt(16) lgkmcnt(0)")
    stamp(a, 3)
    for kt in range(4):
        for c in range(4):
            cc = "0" if c == 0 else vr(S0+4*kt)
            a(f"v_mfma_f32_16x16x32_bf16 {vr(S0+4*kt)}, {vr(K0+16*kt+4*c)}, {vr(Q0+4*c)}, {cc}")
    a("s_nop 7")
    a("s_nop 1")
    for p in range(8):
        x, y = S0+2*p, S0+2*p+1
        a(f"v_cvt_pk_bf16_f32 v2, v{x}, v{y}")
        a(f"v_lshlrev_b32 v{x}, 16, v2")
        a(f"v_and_b32 v{y}, 0xffff0000, v2")
        a(f"v_mul_f32 v{x}, s{S_SCALE}, v{x}")
        a(f"v_mul_f32 v{y}, s{S_SCALE}, v{y}")
        a(f"v_cvt_pk_bf16_f32 v2, v{x}, v{y}")
        a(f"v_lshlrev_b32 v{x}, 16, v2")
        a(f"v_and_b32 v{y}, 0xffff0000, v2")
    a(f"v_max3_f32 v6, v{S0}, v{S0+1}, v{S0+2}")
    for i in range(3, 15, 2):
        a(f"v_max3_f32 v6, v6, v{S0+i}, v{S0+i+1}")
    a(f"v_max_f32 v6, v6, v{S0+15}")
    xg_reduce(a, 6, 7, "v_max_f32")
    a(f"v_mul_f32 v6, s{S_LOG2E}, v6")
    for i in range(16):
        a(f"v_fma_f32 v{S0+i}, v{S0+i}, s{S_LOG2E}, -v6")
    for i in range(16):
        a(f"v_exp_f32 v{S0+i}, v{S0+i}")
    a("s_nop 0")
    a(f"v_add_f32 v7, v{S0}, v{S0+1}")
    for i in range(2, 16):
        a(f"v_add_f32 v7, v7, v{S0+i}")
    xg_reduce(a, 7, 2, "v_add_f32")
    P0 = 56
    for u in range(2):
        for q in range(4):
            a(f"v_cvt_pk_bf16_f32 v{P0+4*u+q}, v{S0+8*u+2*q}, v{S0+8*u+2*q+1}")
    stamp(a, 4)
    O0, TB0 = 8, 40
    for u in range(2):
        a(f"s_waitcnt vmcnt({8 if u == 0 else 0})")
        for w in range(4):
            TB = TB0 + 8*(w % 2)
            for p in range(4):
                a(f"v_perm_b32 v{TB+p}, v{V0+32*u+4*(2*p+1)+w}, v{V0+32*u+4*(2*p)+w}, s{S_SELLO}")
            for p in range(4):
                a(f"v_perm_b32 v{TB+4+p}, v{V0+32*u+4*(2*p+1)+w}, v{V0+32*u+4*(2*p)+w}, s{S_SELHI}")
            a("s_nop 1")
            for h in range(2):
                t = 2*w+h
                cc = "0" if u == 0 else vr(O0+4*t)
                a(f"v_mfma_f32_16x16x32_bf16 {vr(O0+4*t)}, {vr(P0+4*u)}, {vr(TB+4*h)}, {cc}")
    a("s_nop 7")
    a("s_nop 1")
    R0 = 72
    for r in range(4):
        for t in range(8):
            a(f"v_mov_b32 v{R0+8*r+t}, v{O0+4*t+r}")
    a("v_lshrrev_b32 v2, 4, v0")
    a("v_lshlrev_b32 v2, 11, v2")
    a("v_and_b32 v3, 15, v0")
    a("v_lshl_add_u32 v2, v3, 5, v2")
    a("s_lshl_b32 s5, s3, 12")
    a("v_add_u32 v2, s5, v2")
    a("s_mov_b32 exec_lo, -1"); a("s_mov_b32 exec_hi, 0")
    for r in range(4):
        a(f"ds_write_b128 v2, {vr(R0+8*r)} offset:{L_OP + r*512}")
        a(f"ds_write_b128 v2, {vr(R0+8*r+4)} offset:{L_OP + r*512 + 16}")
    a("s_mov_b64 exec, -1")
    a("v_and_b32 v2, 7, v0")
    a("v_lshlrev_b32 v2, 3, v2")
    a("s_lshl_b32 s5, s3, 6")
    a("v_add_u32 v2, s5, v2")
    a(f"ds_write_b64 v2, v[6:7] offset:{L_ML}")
    stamp(a, 5)
    lds_inc(a, L_OCNT)
    lds_wait(a, L_OCNT, 8)
    stamp(a, 6)
    a("s_lshl_b32 s5, s3, 3")
    a("v_mov_b32 v2, s5")
    for w in range(8):
        a(f"ds_read_b64 v[{8+2*w}:{9+2*w}], v2 offset:{L_ML + w*64}")
    a("s_lshl_b32 s5, s3, 9")
    a("v_and_b32 v3, 31, v0")
    a("v_lshlrev_b32 v3, 4, v3")
    a("v_add_u32 v3, s5, v3")
    for w in range(8):
        a(f"ds_read_b128 {vr(24+4*w)}, v3 offset:{L_OP + w*4096}")
    tag_setup(a, 64)
    a("s_waitcnt lgkmcnt(8)")
    a("v_max3_f32 v4, v8, v10, v12")
    a("v_max3_f32 v4, v4, v14, v16")
    a("v_max3_f32 v4, v4, v18, v20")
    a("v_max_f32 v4, v4, v22")
    for w in range(8):
        a(f"v_sub_f32 v{8+2*w}, v{8+2*w}, v4")
    for w in range(8):
        a(f"v_exp_f32 v{8+2*w}, v{8+2*w}")
    a("s_waitcnt lgkmcnt(0)")
    a("v_mul_f32 v5, v8, v9")
    for e in range(4):
        a(f"v_mul_f32 v{60+e}, v8, v{24+e}")
    for w in range(1, 8):
        a(f"v_fmac_f32 v5, v{8+2*w}, v{9+2*w}")
        for e in range(4):
            a(f"v_fmac_f32 v{60+e}, v{8+2*w}, v{24+4*w+e}")
    tag_apply(a, 60, 64)
    a("s_lshr_b32 s5, s96, 4")
    a("s_and_b32 s5, s5, 3")
    a("s_lshl_b32 s5, s5, 3")
    a("s_add_u32 s5, s5, s3")
    a("s_lshl_b32 s5, s5, 2")
    a("s_lshr_b32 s6, s96, 6")
    a("s_add_u32 s5, s5, s6")
    a("s_lshl_b32 s5, s5, 4")
    a("s_and_b32 s6, s96, 15")
    a("s_add_u32 s5, s5, s6")
    a("s_lshl_b32 s5, s5, 10")
    a(f"s_add_u32 s5, s5, {OREC}")
    a("v_lshlrev_b32 v3, 4, v0")
    a(f"v_mov_b32 v6, s{S_TAG}")
    a(f"v_mov_b32 v7, s{S_TAG}")
    a("s_mov_b32 exec_lo, -1"); a("s_mov_b32 exec_hi, 0")
    a(f"buffer_store_dwordx4 v[60:63], v3, {srd(SRD_WS)}, s5 offen sc1")
    a("s_mov_b64 exec, 1")
    a(f"buffer_store_dwordx4 v[4:7], v3, {srd(SRD_WS)}, s5 offen offset:512 sc1")
    a("s_mov_b64 exec, -1")
    lds_inc(a, L_REC)
    stamp(a, 7)
    stamp_flush(a)
    a("s_endpgm")

    a.label("L_notattn")
    if PRIO:
        a("s_setprio 3")
    a("s_cmp_eq_u32 s3, 11")
    a("s_cbranch_scc1 L_comm")
    a("s_cmp_eq_u32 s3, 8")
    a("s_cbranch_scc1 L_w8")
    a("s_cmp_lt_u32 s2, 224")
    a("s_cbranch_scc1 L_ffn")
    a("s_waitcnt lgkmcnt(0)")
    a("s_barrier")
    a("s_endpgm")
    a.label("L_ffn")
    a("s_cmp_eq_u32 s3, 9")
    a("s_cselect_b32 s52, s28, s30")
    a("s_cselect_b32 s53, s29, s31")
    a(f"s_mov_b32 s54, {1024*3584*2}")
    a("s_mov_b32 s55, 0x00020000")
    a("s_lshr_b32 s8, s2, 3")
    a("s_and_b32 s9, s2, 7")
    a("s_lshl_b32 s10, s9, 8")
    ln_issue(a, 10)
    wjob_voff(a, 7168)
    a(f"s_mul_i32 s11, s9, {128*7168}")
    a("s_lshl_b32 s12, s8, 8")
    a("s_add_u32 s11, s11, s12")
    a("s_sub_u32 s13, s3, 8")
    a("s_lshl_b32 s13, s13, 15")
    a(f"s_add_u32 s13, s13, {L_WT}")
    def mid_ffn():
        a(f"s_add_u32 s{S_TAG}, s{S_TAG}, 1")
        a(f"s_waitcnt vmcnt({min(WPACE,32)})")
        stamp(a, 1)
        a("v_mov_b32 v160, v1")
        ln_compute(a)
        a("v_mov_b32 v1, v160")
        stamp(a, 2)
    def gate_ffn():
        if GATE_GU:
            lds_wait(a, L_QJ, 1)
    wjob_issue(a, 7168, 11, None, pace=WPACE, barrier=True, dyn=13, mid=mid_ffn, gate=gate_ffn, bar_at=FBAR)
    a("s_waitcnt vmcnt(0)")
    if STRIP == 1:
        a("s_endpgm")
    a("v_lshlrev_b32 v2, 4, v0")
    a("v_add_u32 v3, s13, v2")
    stamp(a, 3)
    wjob_consume_dyn(a)
    a("s_sub_u32 s12, s3, 9")
    a("s_mul_i32 s14, s12, 458752")
    a("s_mul_i32 s15, s9, 57344")
    a("s_add_u32 s14, s14, s15")
    a("s_lshl_b32 s15, s8, 9")
    a("s_add_u32 s14, s14, s15")
    a(f"s_add_u32 s14, s14, {GUP}")
    a("s_lshl_b32 s15, s8, 4")
    a("s_lshl_b32 s12, s12, 3")
    a("s_add_u32 s15, s15, s12")
    a("s_add_u32 s15, s15, s9")
    a("s_lshl_b32 s15, s15, 2")
    a(f"s_add_u32 s15, s15, {FGU}")
    wjob_store(a, 14, 14336, 15, flag=not NOPOLL)
    stamp(a, 4)
    if STRIP:
        a("s_endpgm")
    a("s_cmp_eq_u32 s3, 9")
    a("s_cbranch_scc1 L_down")
    stamp_flush(a)
    a("s_endpgm")

    a.label("L_down")
    a("s_lshr_b32 s8, s97, 3")
    a("s_and_b32 s9, s97, 7")
    mk_srd(a, SRD_W, 32, 3584*1024*2)
    a("s_lshl_b32 s12, s8, 6")
    a(f"s_add_u32 s12, s12, {FGU}")
    a("v_lshlrev_b32 v6, 2, v0")
    if NOPOLL:
        lds_wait(a, L_ISS, 8)
    else:
        poll_flags(a, 6, 12, 7, execmask="0xffff")
    stamp(a, 5)
    a("v_lshrrev_b32 v2, 4, v0")
    a("v_mul_u32_u24 v2, 14336, v2")
    a("v_and_b32 v3, 15, v0")
    a("v_lshl_add_u32 v2, v3, 4, v2")
    a("s_lshl_b32 s12, s8, 9")
    a(f"s_add_u32 s12, s12, {GUP}")
    G = 8
    def emit(fl):
        for mat in range(2):
            for sp in range(8):
                a(f"s_add_u32 s5, s12, {mat*458752 + sp*57344}")
                a(f"buffer_load_dwordx4 {vr(G+64*mat+8*sp)}, v2, {srd(SRD_WS)}, s5 offen {fl}")
                a(f"buffer_load_dwordx4 {vr(G+64*mat+8*sp+4)}, v2, {srd(SRD_WS)}, s5 offen offset:256 {fl}")
        for q in range(32):
            a(f"s_waitcnt vmcnt({31-q})")
            tag_check(a, G+4*q, 136, 137, 138, first=(q == 0))
    gather(a, emit, 136)
    for mat in range(2):
        for sp in range(1, 8):
            for e in range(8):
                a(f"v_add_f32 v{G+64*mat+e}, v{G+64*mat+e}, v{G+64*mat+8*sp+e}")
    c1 = 0.044715
    c2 = -2.0 * 0.7978845608028654 * 1.4426950408889634
    a(f"s_mov_b32 s12, {f32hex(c1)}")
    a(f"s_mov_b32 s13, {f32hex(c2)}")
    for e in range(8):
        g, u, t = G+e, G+64+e, 16+e
        rne(a, g, g)
        rne(a, u, u)
        a(f"v_mul_f32 v{t}, v{g}, v{g}")
        a(f"v_mul_f32 v{t}, v{t}, v{g}")
        a(f"v_fma_f32 v{t}, v{t}, s12, v{g}")
        a(f"v_mul_f32 v{t}, s13, v{t}")
        a(f"v_exp_f32 v{t}, v{t}")
        a("s_nop 0")
        a(f"v_add_f32 v{t}, 1.0, v{t}")
        a(f"v_rcp_f32 v{t}, v{t}")
        a("s_nop 0")
        a(f"v_mul_f32 v{t}, v{t}, v{g}")
        rne(a, t, t)
        a(f"v_mul_f32 v{t}, v{t}, v{u}")
    for q in range(4):
        a(f"v_cvt_pk_bf16_f32 v{24+q}, v{16+2*q}, v{17+2*q}")
    stamp(a, 6)
    af_via_lds(a, 24, L_AF + 1024)
    wjob_voff(a, 2048)
    lds_wait(a, L_GO, 1)
    a(f"s_mul_i32 s11, s8, {128*2048}")
    a("s_lshl_b32 s12, s9, 8")
    a("s_add_u32 s11, s11, s12")
    wjob_issue(a, 2048, 11, L_WT + 0x8000, pace=TPACE)
    a("s_waitcnt vmcnt(0)")
    stamp(a, 8)
    wjob_consume(a, L_WT + 0x8000)
    a("s_lshl_b32 s14, s9, 17")
    a("s_add_u32 s15, s8, 32")
    a("s_lshl_b32 s12, s15, 11")
    a("s_add_u32 s14, s14, s12")
    a(f"s_add_u32 s14, s14, {SP}")
    a("s_lshl_b32 s12, s9, 6")
    a("s_add_u32 s15, s15, s12")
    a("s_lshl_b32 s15, s15, 2")
    a(f"s_add_u32 s15, s15, {FS}")
    wjob_store(a, 14, 512, 15, flag=not FDIRECT)
    stamp(a, 7)
    stamp_flush(a)
    a("s_endpgm")

    a.label("L_w8")
    mk_srd(a, SRD_W, 22, 1024*4096*2)
    a("s_lshr_b32 s8, s2, 3")
    a("s_and_b32 s9, s2, 7")
    a("s_lshl_b32 s10, s9, 8")
    ln_issue(a, 10)
    wjob_voff(a, 8192)
    a(f"s_mul_i32 s11, s9, {128*8192}")
    a("s_lshl_b32 s12, s8, 8")
    a("s_add_u32 s11, s11, s12")
    def mid_q():
        a(f"s_add_u32 s{S_TAG}, s{S_TAG}, 1")
        a(f"s_waitcnt vmcnt({min(QPACE,32)})")
        stamp(a, 1)
        ln_compute(a)
        stamp(a, 2)
    wjob_issue(a, 8192, 11, L_WT, pace=QPACE, barrier=True, mid=mid_q, bar_at=32)
    a("s_waitcnt vmcnt(0)")
    if GATE_GU:
        lds_inc(a, L_QJ)
    if STRIP == 1:
        a("s_endpgm")
    stamp(a, 3)
    wjob_consume(a, L_WT)
    a("s_lshl_b32 s14, s9, 16")
    a("s_lshl_b32 s15, s8, 9")
    a("s_add_u32 s14, s14, s15")
    a(f"s_add_u32 s14, s14, {QP}")
    a("s_lshl_b32 s15, s2, 2")
    a(f"s_add_u32 s15, s15, {FQ}")
    wjob_store(a, 14, 16384, 15, flag=not NOPOLL)
    if QWAIT:
        lds_inc(a, L_QJ)
    stamp(a, 4)
    if STRIP:
        a("s_endpgm")
    a("s_lshr_b32 s8, s96, 3")
    a("s_and_b32 s9, s96, 7")
    mk_srd(a, SRD_W, 24, 4096*1024*2)
    wjob_voff(a, 2048)
    a("s_lshl_b32 s12, s8, 16")
    a(f"s_add_u32 s12, s12, {OREC}")
    a("v_lshlrev_b32 v6, 10, v0")
    a("v_add_u32 v6, 512, v6")
    lds_wait(a, L_REC, 8)
    if not NOSYNC:
        lp = a.uniq("pa"); dn = a.uniq("pad")
        a(f"s_mov_b32 s{S_TMO}, 100000")
        a.label(lp)
        a(f"buffer_load_dwordx4 {vr(136)}, v6, {srd(SRD_WS)}, s12 offen sc1")
        a("s_waitcnt vmcnt(0)")
        a(f"v_cmp_eq_u32 vcc, s{S_TAG}, v138")
        a("s_nop 3")
        a("s_bcnt1_i32_b64 s4, vcc")
        a(f"s_cmp_ge_u32 s4, {THR}")
        a(f"s_cbranch_scc1 {dn}")
        a(f"s_sleep {PSLEEP}")
        a(f"s_sub_u32 s{S_TMO}, s{S_TMO}, 1")
        a(f"s_cmp_lg_u32 s{S_TMO}, 0")
        a(f"s_cbranch_scc1 {lp}")
        a.label(dn)
    stamp(a, 8)
    lds_inc(a, L_GO)
    a(f"s_mul_i32 s11, s8, {128*2048}")
    a("s_lshl_b32 s13, s9, 8")
    a("s_add_u32 s11, s11, s13")
    wjob_issue(a, 2048, 11, L_WT, pace=TPACE)
    poll_flags(a, 6, 12, 136, width=4, tagreg_idx=2)
    stamp(a, 5)
    a("v_mov_b32 v138, v136")
    row_reduce_max(a, 138)
    a("v_sub_f32 v136, v136, v138")
    a("v_exp_f32 v136, v136")
    a("s_nop 0")
    a("v_mul_f32 v137, v136, v137")
    row_reduce_add(a, 137)
    a("v_rcp_f32 v137, v137")
    a("s_nop 0")
    a("v_mul_f32 v136, v136, v137")
    a("v_lshrrev_b32 v2, 4, v0")
    a("v_lshlrev_b32 v2, 14, v2")
    a("v_and_b32 v3, 15, v0")
    a("v_lshl_add_u32 v2, v3, 5, v2")
    for s in range(16):
        a(f"v_mov_b32_dpp v{140+s}, v136 row_newbcast:{s} row_mask:0xf bank_mask:0xf")
    def emit(fl):
        for s in range(16):
            a(f"s_add_u32 s5, s12, {s*1024}")
            a(f"buffer_load_dwordx4 {vr(8+8*s)}, v2, {srd(SRD_WS)}, s5 offen {fl}")
            a(f"buffer_load_dwordx4 {vr(8+8*s+4)}, v2, {srd(SRD_WS)}, s5 offen offset:16 {fl}")
        for q in range(32):
            a(f"s_waitcnt vmcnt({31-q})")
            tag_check(a, 8+4*q, 136, 137, 138, first=(q == 0))
    gather(a, emit, 136)
    for e in range(8):
        a(f"v_mul_f32 v{8+e}, v{8+e}, v140")
    for s in range(1, 16):
        for e in range(8):
            a(f"v_fmac_f32 v{8+e}, v{8+8*s+e}, v{140+s}")
    for q in range(4):
        a(f"v_cvt_pk_bf16_f32 v{24+q}, v{8+2*q}, v{9+2*q}")
    stamp(a, 6)
    af_via_lds(a, 24, L_AF)
    wjob_consume(a, L_WT)
    a("s_lshl_b32 s14, s9, 17")
    a("s_lshl_b32 s12, s8, 11")
    a("s_add_u32 s14, s14, s12")
    a(f"s_add_u32 s14, s14, {SP}")
    a("s_lshl_b32 s12, s9, 6")
    a("s_add_u32 s15, s8, s12")
    a("s_lshl_b32 s15, s15, 2")
    a(f"s_add_u32 s15, s15, {FS}")
    wjob_store(a, 14, 512, 15, flag=not FDIRECT)
    stamp(a, 7)
    stamp_flush(a)
    a("s_endpgm")

    a.label("L_comm")
    a("v_mov_b32 v2, 0")
    a("v_lshlrev_b32 v3, 2, v0")
    a("ds_write_b32 v3, v2")
    a("s_waitcnt lgkmcnt(0)")
    a("s_barrier")
    a(f"s_add_u32 s{S_TAG}, s{S_TAG}, 1")
    if STRIP in (1, 2):
        a("s_endpgm")
    a("s_lshr_b32 s8, s96, 4")
    a("s_and_b32 s8, s8, 3")
    a("s_lshr_b32 s9, s96, 6")
    a("s_lshl_b32 s12, s8, 8")
    a(f"s_add_u32 s12, s12, {FQ}")
    if NOPOLL:
        lds_wait(a, L_KISS, QTHR)
    else:
        if QWAIT:
            lds_wait(a, L_QJ, 1)
        a("v_lshlrev_b32 v6, 2, v0")
        poll_flags(a, 6, 12, 7)
    stamp(a, 1)
    if NOGATH:
        a("s_endpgm")
    a("s_lshl_b32 s12, s9, 14")
    a("s_lshl_b32 s13, s8, 12")
    a("s_add_u32 s12, s12, s13")
    a(f"s_add_u32 s12, s12, {QP}")
    a("v_lshlrev_b32 v2, 4, v0")
    def emit(fl):
        for sp in range(8):
            a(f"s_add_u32 s5, s12, {sp*65536}")
            for q in range(4):
                a(f"buffer_load_dwordx4 {vr(8+16*sp+4*q)}, v2, {srd(SRD_WS)}, s5 offen offset:{1024*q} {fl}")
        for q in range(32):
            a(f"s_waitcnt vmcnt({31-q})")
            tag_check(a, 8+4*q, 136, 137, 138, first=(q == 0))
    gather(a, emit, 136)
    for sp in range(1, 8):
        for e in range(16):
            a(f"v_add_f32 v{8+e}, v{8+e}, v{8+16*sp+e}")
    for q in range(8):
        a(f"v_cvt_pk_bf16_f32 v{24+q}, v{8+2*q}, v{9+2*q}")
    a("v_lshrrev_b32 v2, 5, v0")
    a("v_lshlrev_b32 v2, 8, v2")
    a("v_and_b32 v3, 15, v0")
    a("v_lshl_add_u32 v2, v3, 4, v2")
    a("v_bfe_u32 v3, v0, 4, 1")
    a("v_lshl_add_u32 v2, v3, 3, v2")
    for q in range(4):
        a(f"ds_write_b64 v2, v[{24+2*q}:{25+2*q}] offset:{L_QS + 512*q}")
    lds_inc(a, L_QRDY)
    stamp(a, 2)
    if STRIP:
        a("s_endpgm")
    a(f"s_cmp_lt_u32 s2, {128 if F128 else 32}")
    a("s_cbranch_scc1 L_final")
    stamp_flush(a)
    a("s_endpgm")
    a.label("L_final")
    if F128:
        final128(a)
    else:
        final32(a)
    a("s_mov_b64 exec, -1")
    a("s_cmp_lg_u32 s2, 0")
    a("s_cbranch_scc1 L_end")
    a("s_mov_b64 exec, 1")
    a("v_mov_b32 v2, 0")
    a(f"v_mov_b32 v3, s{S_TAG}")
    a(f"buffer_store_dword v3, v2, {srd(SRD_WS)}, 0 offen sc1")
    a.label("L_end")
    a("s_endpgm")

    out += a.l
    out += ['.section .rodata,"a"', ".p2align 6", f".amdhsa_kernel {NAME}",
            "  .amdhsa_next_free_vgpr 168", "  .amdhsa_next_free_sgpr 100", "  .amdhsa_accum_offset 168",
            "  .amdhsa_group_segment_fixed_size 0", "  .amdhsa_kernarg_size 96", "  .amdhsa_user_sgpr_count 2",
            "  .amdhsa_user_sgpr_kernarg_segment_ptr 1", "  .amdhsa_system_sgpr_workgroup_id_x 1",
            ".end_amdhsa_kernel"]
    open(path, "w").write("\n".join(out) + "\n")

def wjob_consume_dyn(a):
    def rd(tb, T):
        for i in range(8):
            a(f"ds_read_b128 {vr(T+4*i)}, v3 offset:{(tb*8+i)*1024}")
    rd(0, W_T0)
    for tb in range(4):
        T = W_T0 if tb % 2 == 0 else W_T1
        if tb < 3:
            rd(tb+1, W_T1 if tb % 2 == 0 else W_T0)
            a("s_waitcnt lgkmcnt(8)")
        else:
            a("s_waitcnt lgkmcnt(0)")
        for w in range(4):
            TB = W_TB + 8*(w % 2)
            for p in range(4):
                a(f"v_perm_b32 v{TB+p}, v{T+4*(2*p+1)+w}, v{T+4*(2*p)+w}, s{S_SELLO}")
            for p in range(4):
                a(f"v_perm_b32 v{TB+4+p}, v{T+4*(2*p+1)+w}, v{T+4*(2*p)+w}, s{S_SELHI}")
            a("s_nop 1")
            for h in range(2):
                t = 2*w + h
                c = "0" if tb == 0 else vr(W_ACC+4*t)
                a(f"v_mfma_f32_16x16x32_bf16 {vr(W_ACC+4*t)}, {vr(W_AF+4*tb)}, {vr(TB+4*h)}, {c}")

if __name__ == "__main__":
    depth = int(sys.argv[2]) if len(sys.argv) > 2 else 8
    STAMPS = "stamps" in sys.argv
    for x in sys.argv[3:]:
        if "=" in x:
            k, v = x.split("=")
            globals()[k] = int(v) if v.lstrip('-').isdigit() else v.replace('_', ' ').strip()
    gen(sys.argv[1], depth)
```

```python
import struct, sys

NAME = "recurrent_scan__gqa_block_cached__glu_gated_geglu__decode_kernel"

def f32hex(x):
    return "0x%08x" % struct.unpack("<I", struct.pack("<f", x))[0]

EPOCH = 0
FQ = 0x1000
FGU = 0x2000
FO = 0x8000
FS = 0x3000
QP = 0x100000
GUP = 0x200000
OREC = 0x400000
SP = 0x800000

L_QRDY = 0
L_OCNT = 4
L_ISS = 8
L_QJ = 12
L_OAF = 36
L_KISS = 24
L_GO = 16
L_REC = 20
L_ML = 0x100
L_QS = 0x400
L_AF = 0xC00
L_OP = 0x2000
L_WT = 0xA000
LDS_BYTES = 0xA000 + 3 * 0x8000

S_TAG = 40
S_TMO = 41
SRD_K, SRD_V, SRD_W, SRD_WS, SRD_X, SRD_OUT = 44, 48, 52, 56, 60, 64
S_SELLO, S_SELHI, S_SCALE, S_LOG2E = 68, 69, 70, 71

class A:
    def __init__(self):
        self.l = []
        self.n = 0
    def __call__(self, s):
        self.l.append("    " + s)
    def label(self, s):
        self.l.append(s + ":")
    def uniq(self, p):
        self.n += 1
        return f"L_{p}_{self.n}"

def vr(b, n=4):
    return f"v[{b}:{b+n-1}]"

def srd(b):
    return f"s[{b}:{b+3}]"

def mk_srd(a, d, ptr, nbytes):
    a(f"s_mov_b32 s{d}, s{ptr}")
    a(f"s_mov_b32 s{d+1}, s{ptr+1}")
    a(f"s_mov_b32 s{d+2}, {nbytes}")
    a(f"s_mov_b32 s{d+3}, 0x00020000")

def lds_wait(a, addr, n, vtmp=2, vz=3):
    lp = a.uniq("lw"); dn = a.uniq("lwd")
    a(f"s_mov_b32 s{S_TMO}, 400000")
    a(f"v_mov_b32 v{vz}, 0")
    a.label(lp)
    a(f"ds_read_b32 v{vtmp}, v{vz} offset:{addr}")
    a("s_waitcnt lgkmcnt(0)")
    a(f"v_readfirstlane_b32 s4, v{vtmp}")
    a("s_nop 3")
    a(f"s_cmp_ge_u32 s4, {n}")
    a(f"s_cbranch_scc1 {dn}")
    a("s_sleep 1")
    a(f"s_sub_u32 s{S_TMO}, s{S_TMO}, 1")
    a(f"s_cmp_lg_u32 s{S_TMO}, 0")
    a(f"s_cbranch_scc1 {lp}")
    a.label(dn)

def lds_inc(a, addr, v1=2, v2=3):
    a("s_mov_b64 exec, 1")
    a(f"v_mov_b32 v{v1}, 0")
    a(f"v_mov_b32 v{v2}, 1")
    a(f"ds_add_u32 v{v1}, v{v2} offset:{addr}")
    a("s_mov_b64 exec, -1")

def poll_flags(a, voff, soff_reg, vdst, width=1, tagreg_idx=0, execmask=None):
    lp = a.uniq("pl"); dn = a.uniq("pld")
    if NOSYNC:
        a("s_waitcnt vmcnt(0)")
        return
    a(f"s_mov_b32 s{S_TMO}, 100000")
    if execmask is not None:
        a(f"s_mov_b64 exec, {execmask}")
    a.label(lp)
    if width == 1:
        a(f"buffer_load_dword v{vdst}, v{voff}, {srd(SRD_WS)}, s{soff_reg} offen sc1")
    else:
        a(f"buffer_load_dwordx4 {vr(vdst)}, v{voff}, {srd(SRD_WS)}, s{soff_reg} offen sc1")
    a("s_waitcnt vmcnt(0)")
    a(f"v_cmp_ne_u32 vcc, s{S_TAG}, v{vdst+tagreg_idx}")
    a("s_nop 3")
    a("s_cmp_eq_u64 vcc, 0")
    a(f"s_cbranch_scc1 {dn}")
    a(f"s_sleep {PSLEEP}")
    a(f"s_sub_u32 s{S_TMO}, s{S_TMO}, 1")
    a(f"s_cmp_lg_u32 s{S_TMO}, 0")
    a(f"s_cbranch_scc1 {lp}")
    a.label(dn)
    if execmask is not None:
        a("s_mov_b64 exec, -1")

STAMPS = False
WPACE = 64
DBGT = 0
OFLAG = 0
OPAR = 0
OSLEEP = 2
GOREC = 8
F128 = 0
FDIRECT = 0
QTHR = 8
NOPOLL = 0
QTRIG = 16
RSLEEP = 8
STF = 'sc1'
NOFLAG = 0
NOGATH = 0
THR = 32
QWAIT = 0
VDEPTH = 4
VFROM = 16
STRIP = 0
TLATE = 0
L2G = 1
FBAR = 2
PRIO = 0
ABAR = 2
GATE_GU = 0
NOSYNC = 0
PSLEEP = 2
QPACE = 64
TPACE = 64
STAMP_BASE = 0xF00000
def stamp(a, idx):
    if not STAMPS: return
    a("s_memrealtime s[90:91]")
    a("s_waitcnt lgkmcnt(0)")
    a(f"s_mov_b32 s{72+idx}, s90")

def stamp_flush(a):
    if not STAMPS: return
    a("s_mov_b64 exec, 1")
    a("s_lshl_b32 s92, s2, 10")
    a("s_lshl_b32 s93, s3, 6")
    a("s_add_u32 s92, s92, s93")
    a(f"s_add_u32 s92, s92, {STAMP_BASE}")
    a("v_mov_b32 v1, 0")
    for q in range(4):
        for e in range(4):
            a(f"v_mov_b32 v{8+4*q+e}, s{72+4*q+e}")
        a(f"buffer_store_dwordx4 v[{8+4*q}:{11+4*q}], v1, {srd(SRD_WS)}, s92 offen offset:{16*q}")

S_MFF, S_PA, S_PB = 42, 43, 88
def tag_setup(a, vt):
    for i in range(4):
        a(f"v_mov_b32 v{vt+i}, s{S_TAG}")
        if i:
            a(f"v_lshrrev_b32 v{vt+i}, {8*i}, v{vt+i}")

def tag_apply(a, R, vt):
    for i in range(4):
        a(f"v_bfi_b32 v{R+i}, s{S_MFF}, v{vt+i}, v{R+i}")

def tag_check(a, R, acc, t1, t2, first=False):
    a(f"v_perm_b32 v{t1}, v{R+1}, v{R}, s{S_PA}")
    a(f"v_perm_b32 v{t2}, v{R+3}, v{R+2}, s{S_PB}")
    a(f"v_or_b32 v{t1}, v{t1}, v{t2}")
    if first:
        a(f"v_xor_b32 v{acc}, s{S_TAG}, v{t1}")
    else:
        a(f"v_xor_b32 v{t1}, s{S_TAG}, v{t1}")
        a(f"v_or_b32 v{acc}, v{acc}, v{t1}")

def gather(a, emit, acc):
    lp = a.uniq("gr"); dn = a.uniq("grd")
    emit("" if L2G else "sc1")
    if NOSYNC: return
    a(f"v_cmp_ne_u32 vcc, 0, v{acc}")
    a("s_nop 3")
    a("s_cmp_eq_u64 vcc, 0")
    a(f"s_cbranch_scc1 {dn}")
    a(f"s_mov_b32 s{S_TMO}, 100000")
    a.label(lp)
    emit("sc1")
    a(f"v_cmp_ne_u32 vcc, 0, v{acc}")
    a("s_nop 3")
    a("s_cmp_eq_u64 vcc, 0")
    a(f"s_cbranch_scc1 {dn}")
    a(f"s_sleep {RSLEEP}")
    a(f"s_sub_u32 s{S_TMO}, s{S_TMO}, 1")
    a(f"s_cmp_lg_u32 s{S_TMO}, 0")
    a(f"s_cbranch_scc1 {lp}")
    a.label(dn)

def gather_retry_begin(a):
    lp = a.uniq("gr")
    a(f"s_mov_b32 s{S_TMO}, 100000")
    a.label(lp)
    return lp

def gather_retry_end(a, lp, acc):
    dn = a.uniq("grd")
    if NOSYNC: return
    a(f"v_cmp_ne_u32 vcc, 0, v{acc}")
    a("s_nop 3")
    a("s_cmp_eq_u64 vcc, 0")
    a(f"s_cbranch_scc1 {dn}")
    a("s_sleep 1")
    a(f"s_sub_u32 s{S_TMO}, s{S_TMO}, 1")
    a(f"s_cmp_lg_u32 s{S_TMO}, 0")
    a(f"s_cbranch_scc1 {lp}")
    a.label(dn)

def rne(a, dst, src):
    a(f"v_cvt_pk_bf16_f32 v{dst}, v{src}, v{src}")
    a(f"v_lshlrev_b32 v{dst}, 16, v{dst}")

def row_reduce_add(a, v):
    for r in (8, 4, 2, 1):
        a("s_nop 1")
        a(f"v_add_f32_dpp v{v}, v{v}, v{v} row_ror:{r} row_mask:0xf bank_mask:0xf")

def row_reduce_max(a, v):
    for r in (8, 4, 2, 1):
        a("s_nop 1")
        a(f"v_max_f32_dpp v{v}, v{v}, v{v} row_ror:{r} row_mask:0xf bank_mask:0xf")

def xg_reduce(a, v, t, op):
    a(f"v_mov_b32 v{t}, v{v}")
    a("s_nop 1")
    a(f"v_permlane32_swap_b32 v{v}, v{t}")
    a("s_nop 1")
    a(f"{op} v{v}, v{v}, v{t}")
    a(f"v_mov_b32 v{t}, v{v}")
    a("s_nop 1")
    a(f"v_permlane16_swap_b32 v{v}, v{t}")
    a("s_nop 1")
    a(f"{op} v{v}, v{v}, v{t}")

W_T0, W_T1, W_ACC, W_TB, W_AF, W_M2 = 8, 40, 72, 104, 120, 136

def wjob_issue(a, rs, s_base, lds_slot, pace=64, barrier=False, dyn=None, mid=None, gate=None, bar_at=2):
    n = 0
    done = False
    for tb in range(4):
        for i in range(8):
            if barrier and n == bar_at:
                a("s_waitcnt lgkmcnt(0)")
                a("s_barrier")
                if gate: gate()
            if n == pace:
                if mid: mid()
                done = True
            if n >= pace:
                a(f"s_waitcnt vmcnt({pace-1})")
            a(f"s_add_u32 s5, s{s_base}, {(32*tb+i)*rs}")
            if dyn is None:
                a(f"s_mov_b32 m0, {lds_slot + (tb*8+i)*1024}")
            else:
                a(f"s_add_u32 s14, s{dyn}, {(tb*8+i)*1024}")
                a("s_mov_b32 m0, s14")
            a("s_nop 0")
            a(f"buffer_load_dwordx4 v1, {srd(SRD_W)}, s5 offen nt lds")
            n += 1
    if barrier and bar_at >= 32:
        a("s_waitcnt lgkmcnt(0)")
        a("s_barrier")
    if not done:
        if mid: mid()

def wjob_voff(a, rs):
    a("v_lshrrev_b32 v2, 4, v0")
    a(f"s_mov_b32 s5, {8*rs}")
    a("v_mul_lo_u32 v2, v2, s5")
    a("v_and_b32 v1, 15, v0")
    a("v_lshlrev_b32 v1, 4, v1")
    a("v_add_u32 v1, v1, v2")

def wjob_consume(a, lds_slot):
    a("v_lshlrev_b32 v2, 4, v0")
    def rd(tb, T):
        for i in range(8):
            off = lds_slot + (tb*8+i)*1024
            a(f"ds_read_b128 {vr(T+4*i)}, v3 offset:{(tb*8+i)*1024}")
    a(f"v_add_u32 v3, {lds_slot}, v2")
    rd(0, W_T0)
    for tb in range(4):
        T = W_T0 if tb % 2 == 0 else W_T1
        if tb < 3:
            rd(tb+1, W_T1 if tb % 2 == 0 else W_T0)
            a("s_waitcnt lgkmcnt(8)")
        else:
            a("s_waitcnt lgkmcnt(0)")
        for w in range(4):
            TB = W_TB + 8*(w % 2)
            for p in range(4):
                a(f"v_perm_b32 v{TB+p}, v{T+4*(2*p+1)+w}, v{T+4*(2*p)+w}, s{S_SELLO}")
            for p in range(4):
                a(f"v_perm_b32 v{TB+4+p}, v{T+4*(2*p+1)+w}, v{T+4*(2*p)+w}, s{S_SELHI}")
            a("s_nop 1")
            for h in range(2):
                t = 2*w + h
                c = "0" if tb == 0 else vr(W_ACC+4*t)
                a(f"v_mfma_f32_16x16x32_bf16 {vr(W_ACC+4*t)}, {vr(W_AF+4*tb)}, {vr(TB+4*h)}, {c}")

def wjob_store(a, s_out, mstride, s_flag, flag=True):
    tag_setup(a, W_M2)
    a("s_nop 7")
    R = W_T0
    for m in range(4):
        for t in range(8):
            a(f"v_bfi_b32 v{R+8*m+t}, s{S_MFF}, v{W_M2+(t&3)}, v{W_ACC+4*t+m}")
    a("v_lshlrev_b32 v2, 4, v0")
    a("s_mov_b64 exec, 0xffff")
    for m in range(4):
        a(f"s_add_u32 s5, s{s_out}, {m*mstride}")
        a(f"buffer_store_dwordx4 {vr(R+8*m)}, v2, {srd(SRD_WS)}, s5 offen {STF}")
        a(f"buffer_store_dwordx4 {vr(R+8*m+4)}, v2, {srd(SRD_WS)}, s5 offen offset:256 {STF}")
    a("s_mov_b64 exec, 1")
    a("v_mov_b32 v2, 0")
    if flag and not NOFLAG:
        a(f"buffer_store_dword v{W_M2}, v2, {srd(SRD_WS)}, s{s_flag} offen {STF}")
    a("s_mov_b64 exec, -1")

def ln_issue(a, s_r0x2):
    a("v_lshrrev_b32 v2, 4, v0")
    a("v_lshlrev_b32 v2, 11, v2")
    a("v_and_b32 v3, 15, v0")
    a("v_lshlrev_b32 v3, 7, v3")
    a("v_add_u32 v2, v2, v3")
    for k in range(8):
        a(f"buffer_load_dwordx4 {vr(W_T0+4*k)}, v2, {srd(SRD_X)}, 0 offen offset:{16*k}")
    a("v_and_b32 v3, 3, v0")
    a("v_lshlrev_b32 v3, 11, v3")
    a("v_lshrrev_b32 v4, 4, v0")
    a("v_lshlrev_b32 v4, 4, v4")
    a("v_add_u32 v3, v3, v4")
    for tb in range(4):
        a(f"buffer_load_dwordx4 {vr(W_AF+4*tb)}, v3, {srd(SRD_X)}, s{s_r0x2} offen offset:{64*tb}")

def ln_compute(a):
    X = W_T0
    a("v_mov_b32 v2, 0")
    a("v_mov_b32 v3, 0")
    for r in range(32):
        a(f"v_lshlrev_b32 v4, 16, v{X+r}")
        a(f"v_and_b32 v5, 0xffff0000, v{X+r}")
        a("v_add_f32 v2, v2, v4")
        a("v_add_f32 v3, v3, v5")
    a("v_add_f32 v2, v2, v3")
    row_reduce_add(a, 2)
    a(f"v_mul_f32 v2, {f32hex(1.0/1024)}, v2")
    a("v_mov_b32 v3, 0")
    a("v_mov_b32 v6, 0")
    for r in range(32):
        a(f"v_lshlrev_b32 v4, 16, v{X+r}")
        a(f"v_and_b32 v5, 0xffff0000, v{X+r}")
        a("v_sub_f32 v4, v4, v2")
        a("v_sub_f32 v5, v5, v2")
        a("v_fmac_f32 v3, v4, v4")
        a("v_fmac_f32 v6, v5, v5")
    a("v_add_f32 v3, v3, v6")
    row_reduce_add(a, 3)
    a(f"v_mul_f32 v3, {f32hex(1.0/1024)}, v3")
    rne(a, 2, 2)
    rne(a, 3, 3)
    a(f"v_add_f32 v3, {f32hex(1e-5)}, v3")
    rne(a, 3, 3)
    a("v_sqrt_f32 v3, v3")
    a("s_nop 0")
    rne(a, 3, 3)
    a("v_and_b32 v4, 3, v0")
    a("v_lshlrev_b32 v4, 6, v4")
    a("ds_bpermute_b32 v2, v4, v2")
    a("ds_bpermute_b32 v3, v4, v3")
    a("s_waitcnt lgkmcnt(0)")
    a("v_rcp_f32 v4, v3")
    a("s_nop 0")
    for r in range(16):
        R = W_AF + r
        a(f"v_lshlrev_b32 v5, 16, v{R}")
        a(f"v_and_b32 v6, 0xffff0000, v{R}")
        a("v_sub_f32 v5, v5, v2")
        a("v_sub_f32 v6, v6, v2")
        a("v_cvt_pk_bf16_f32 v7, v5, v6")
        a("v_lshlrev_b32 v5, 16, v7")
        a("v_and_b32 v6, 0xffff0000, v7")
        a(f"v_mul_f32 v{W_M2}, v5, v4")
        a(f"v_mul_f32 v{W_M2+1}, v6, v4")
        a(f"v_fma_f32 v5, -v{W_M2}, v3, v5")
        a(f"v_fma_f32 v6, -v{W_M2+1}, v3, v6")
        a(f"v_fma_f32 v{W_M2}, v5, v4, v{W_M2}")
        a(f"v_fma_f32 v{W_M2+1}, v6, v4, v{W_M2+1}")
        a(f"v_cvt_pk_bf16_f32 v{R}, v{W_M2}, v{W_M2+1}")

def af_via_lds(a, vpk, lds_af):
    a("v_lshlrev_b32 v2, 4, v0")
    a(f"ds_write_b128 v2, {vr(vpk)} offset:{lds_af}")
    a("v_and_b32 v2, 3, v0")
    a("v_lshlrev_b32 v2, 8, v2")
    a("v_lshrrev_b32 v3, 4, v0")
    a("v_lshlrev_b32 v3, 4, v3")
    a("v_add_u32 v2, v2, v3")
    a("s_waitcnt lgkmcnt(0)")
    for tb in range(4):
        a(f"ds_read_b128 {vr(W_AF+4*tb)}, v2 offset:{lds_af + 64*tb}")
    a("s_waitcnt lgkmcnt(0)")

def final32(a):
    a("s_and_b32 s8, s2, 7")
    a("s_lshr_b32 s9, s2, 3")
    a("s_lshl_b32 s12, s8, 8")
    a(f"s_add_u32 s12, s12, {FS}")
    a("v_lshlrev_b32 v6, 2, v0")
    if FDIRECT:
        lds_wait(a, L_REC, 8)
    else:
        a("s_mov_b32 s10, -1")
        a("s_mov_b32 s11, 0x0fffffff")
        poll_flags(a, 6, 12, 7, execmask="s[10:11]")
    stamp(a, 3)
    a("v_and_b32 v3, 31, v0")
    a("v_and_b32 v4, 15, v0")
    a("v_lshlrev_b32 v4, 4, v4")
    a("v_bfe_u32 v5, v0, 4, 1")
    a("v_lshl_add_u32 v4, v5, 3, v4")
    a("s_lshl_b32 s13, s9, 11")
    a("s_lshl_b32 s14, s8, 8")
    a("s_add_u32 s13, s13, s14")
    a(f"buffer_load_dwordx2 v[140:141], v4, {srd(SRD_X)}, s13 offen")
    a("v_lshrrev_b32 v2, 5, v0")
    a("v_lshlrev_b32 v2, 16, v2")
    a("v_lshl_add_u32 v2, v3, 4, v2")
    a("s_lshl_b32 s12, s8, 17")
    a("s_lshl_b32 s14, s9, 9")
    a("s_add_u32 s12, s12, s14")
    a(f"s_add_u32 s12, s12, {SP}")
    tag_setup(a, 144)
    def emit(fl):
        for j in range(28, 32):
            for e in range(4):
                a(f"v_and_b32 v{8+4*j+e}, 0xff, v{144+e}")
        for j in range(32):
            if j == 28:
                a("s_mov_b32 exec_lo, -1"); a("s_mov_b32 exec_hi, 0")
            a(f"s_add_u32 s5, s12, {j*2048}")
            a(f"buffer_load_dwordx4 {vr(8+4*j)}, v2, {srd(SRD_WS)}, s5 offen {fl}")
        a("s_mov_b64 exec, -1")
        for q in range(32):
            a(f"s_waitcnt vmcnt({31-q})")
            tag_check(a, 8+4*q, 136, 137, 138, first=(q == 0))
    gather(a, emit, 136)
    for j in range(1, 32):
        for e in range(4):
            a(f"v_add_f32 v{8+e}, v{8+e}, v{8+4*j+e}")
    for e in range(4):
        a(f"v_mov_b32 v{12+e}, v{8+e}")
    a("s_nop 1")
    for e in range(4):
        a(f"v_permlane32_swap_b32 v{8+e}, v{12+e}")
    a("s_nop 1")
    a(f"s_mov_b32 s14, {f32hex(-1.4426950408889634)}")
    for e in range(4):
        s_, f_, t = 8+e, 12+e, 16+e
        rne(a, s_, s_)
        rne(a, f_, f_)
        a(f"v_mul_f32 v{t}, s14, v{f_}")
        a(f"v_exp_f32 v{t}, v{t}")
        a("s_nop 0")
        a(f"v_add_f32 v{t}, 1.0, v{t}")
        a(f"v_rcp_f32 v{t}, v{t}")
        a("s_nop 0")
        a(f"v_mul_f32 v{t}, v{t}, v{f_}")
        rne(a, t, t)
        a(f"v_mul_f32 v{t}, v{t}, v{s_}")
        rne(a, t, t)
        xr = 140 + e // 2
        if e % 2 == 0:
            a(f"v_lshlrev_b32 v{s_}, 16, v{xr}")
        else:
            a(f"v_and_b32 v{s_}, 0xffff0000, v{xr}")
        a(f"v_add_f32 v{t}, v{t}, v{s_}")
    a("v_cvt_pk_bf16_f32 v20, v16, v17")
    a("v_cvt_pk_bf16_f32 v21, v18, v19")
    a("s_mov_b32 exec_lo, -1"); a("s_mov_b32 exec_hi, 0")
    a(f"buffer_store_dwordx2 v[20:21], v4, {srd(SRD_OUT)}, s13 offen")
    stamp(a, 4)
    stamp_flush(a)

def final128(a):
    a("s_and_b32 s8, s2, 7")
    a("s_lshr_b32 s9, s2, 3")
    a("s_and_b32 s9, s9, 3")
    a("s_lshr_b32 s10, s2, 5")
    lds_wait(a, L_REC, 8)
    stamp(a, 3)
    a("v_and_b32 v3, 7, v0")
    a("s_lshl_b32 s11, s10, 3")
    a("v_add_u32 v3, s11, v3")
    a("v_and_b32 v4, 15, v3")
    a("v_lshlrev_b32 v4, 4, v4")
    a("v_lshrrev_b32 v5, 4, v3")
    a("v_lshl_add_u32 v4, v5, 3, v4")
    a("s_lshl_b32 s13, s9, 11")
    a("s_lshl_b32 s14, s8, 8")
    a("s_add_u32 s13, s13, s14")
    a(f"buffer_load_dwordx2 v[140:141], v4, {srd(SRD_X)}, s13 offen")
    a("v_lshrrev_b32 v2, 3, v0")
    a("v_lshlrev_b32 v2, 11, v2")
    a("v_lshl_add_u32 v2, v3, 4, v2")
    a("s_lshl_b32 s12, s8, 17")
    a("s_lshl_b32 s14, s9, 9")
    a("s_add_u32 s12, s12, s14")
    a(f"s_add_u32 s12, s12, {SP}")
    tag_setup(a, 144)
    def emit(fl):
        for e in range(4):
            a(f"v_and_b32 v{8+28+e}, 0xff, v{144+e}")
        for i in range(8):
            if i == 7:
                a("s_mov_b32 exec_lo, -1"); a("s_mov_b32 exec_hi, 0")
            a(f"s_add_u32 s5, s12, {i*8*2048}")
            a(f"buffer_load_dwordx4 {vr(8+4*i)}, v2, {srd(SRD_WS)}, s5 offen {fl}")
        a("s_mov_b64 exec, -1")
        for q in range(8):
            a(f"s_waitcnt vmcnt({7-q})")
            tag_check(a, 8+4*q, 136, 137, 138, first=(q == 0))
    gather(a, emit, 136)
    for e in range(4):
        a(f"v_add_f32 v{8+e}, v{8+e}, v{12+e}")
        a(f"v_add_f32 v{16+e}, v{16+e}, v{20+e}")
        a(f"v_add_f32 v{24+e}, v{24+e}, v{28+e}")
        a(f"v_add_f32 v{32+e}, v{32+e}, v{36+e}")
    for e in range(4):
        a(f"v_add_f32 v{8+e}, v{8+e}, v{16+e}")
        a(f"v_add_f32 v{12+e}, v{24+e}, v{32+e}")
    a("s_nop 1")
    for e in range(8):
        a(f"v_add_f32_dpp v{8+e}, v{8+e}, v{8+e} row_ror:8 row_mask:0xf bank_mask:0xf")
    for e in range(8):
        a(f"v_mov_b32 v{40+e}, v{8+e}")
    a("s_nop 1")
    for e in range(8):
        a(f"v_permlane32_swap_b32 v{8+e}, v{40+e}")
    a("s_nop 1")
    for e in range(8):
        a(f"v_add_f32 v{8+e}, v{8+e}, v{40+e}")
    for e in range(8):
        a(f"v_mov_b32 v{40+e}, v{8+e}")
    a("s_nop 1")
    for e in range(8):
        a(f"v_permlane16_swap_b32 v{8+e}, v{40+e}")
    a("s_nop 1")
    for e in range(8):
        a(f"v_add_f32 v{8+e}, v{8+e}, v{40+e}")
    a(f"s_mov_b32 s14, {f32hex(-1.4426950408889634)}")
    for e in range(4):
        s_, f_, t = 8+e, 12+e, 16+e
        rne(a, s_, s_)
        rne(a, f_, f_)
        a(f"v_mul_f32 v{t}, s14, v{f_}")
        a(f"v_exp_f32 v{t}, v{t}")
        a("s_nop 0")
        a(f"v_add_f32 v{t}, 1.0, v{t}")
        a(f"v_rcp_f32 v{t}, v{t}")
        a("s_nop 0")
        a(f"v_mul_f32 v{t}, v{t}, v{f_}")
        rne(a, t, t)
        a(f"v_mul_f32 v{t}, v{t}, v{s_}")
        rne(a, t, t)
        xr = 140 + e // 2
        if e % 2 == 0:
            a(f"v_lshlrev_b32 v{s_}, 16, v{xr}")
        else:
            a(f"v_and_b32 v{s_}, 0xffff0000, v{xr}")
        a(f"v_add_f32 v{t}, v{t}, v{s_}")
    a("v_cvt_pk_bf16_f32 v20, v16, v17")
    a("v_cvt_pk_bf16_f32 v21, v18, v19")
    a("s_mov_b64 exec, 0xff")
    a(f"buffer_store_dwordx2 v[20:21], v4, {srd(SRD_OUT)}, s13 offen")
    stamp(a, 4)
    stamp_flush(a)

def gen(path, depth=8):
    a = A()
    hdr = open("recurrent_scan__gqa_block_cached__glu_gated_geglu__decode.s.ref").read().split("\n")
    top = [l for l in hdr if l.startswith(";") and "@launch" not in l]
    out = top + [f"; @launch grid=(256,1,1) block=(768,1,1) lds={LDS_BYTES}"]
    out += ['.amdgcn_target "amdgcn-amd-amdhsa--gfx950"', ".text", f".globl {NAME}", ".p2align 8",
            f".type {NAME},@function", f"{NAME}:"]
    a("s_cmp_ge_u32 s2, 256")
    a("s_cbranch_scc1 L_end")
    a("s_load_dwordx16 s[16:31], s[0:1], 0")
    a("s_load_dwordx8 s[32:39], s[0:1], 64")
    a("v_lshrrev_b32 v1, 6, v0")
    a("v_and_b32 v0, 63, v0")
    a("s_nop 0")
    a("v_readfirstlane_b32 s3, v1")
    a("s_and_b32 s4, s2, 7")
    a("s_lshr_b32 s5, s2, 3")
    a("s_lshl_b32 s96, s4, 5")
    a("s_add_u32 s96, s96, s5")
    a("s_mul_i32 s97, s4, 28")
    a("s_add_u32 s97, s97, s5")
    a(f"s_mov_b32 s{S_SELLO}, 0x05040100")
    a(f"s_mov_b32 s{S_SELHI}, 0x07060302")
    a(f"s_mov_b32 s{S_SCALE}, {f32hex(128 ** -0.5)}")
    a(f"s_mov_b32 s{S_LOG2E}, {f32hex(1.4426950408889634)}")
    a(f"s_mov_b32 s{S_MFF}, 0xff")
    a(f"s_mov_b32 s{S_PA}, 0x0c0c0400")
    a(f"s_mov_b32 s{S_PB}, 0x04000c0c")
    a("s_waitcnt lgkmcnt(0)")
    a(f"s_load_dword s{S_TAG}, s[38:39], {EPOCH}")
    mk_srd(a, SRD_K, 18, 0x2000000)
    mk_srd(a, SRD_V, 20, 0x2000000)
    mk_srd(a, SRD_WS, 38, 0x10000000)
    mk_srd(a, SRD_X, 16, 8192)
    mk_srd(a, SRD_OUT, 34, 8192)
    if STAMPS:
        for i in range(16): a(f"s_mov_b32 s{72+i}, 0")
    stamp(a, 0)
    a("s_cmp_ge_u32 s3, 8")
    a("s_cbranch_scc1 L_notattn")

    K0, V0, Q0, S0 = 8, 72, 136, 152
    a("s_lshl_b32 s6, s96, 17")
    a("s_lshl_b32 s5, s3, 14")
    a("s_add_u32 s6, s6, s5")
    a("v_and_b32 v2, 15, v0")
    a("v_lshrrev_b32 v3, 4, v0")
    a("v_lshlrev_b32 v4, 8, v2")
    a("v_lshl_add_u32 v4, v3, 4, v4")
    a("v_lshlrev_b32 v5, 10, v3")
    a("v_lshl_add_u32 v5, v2, 4, v5")
    loads = []
    for kt in range(4):
        for c in range(4):
            loads.append((SRD_K, 4, K0+16*kt+4*c, kt*4096, c*64))
    for u in range(2):
        for i in range(8):
            loads.append((SRD_V, 5, V0+32*u+4*i, u*8192+(i >> 2)*4096, (i & 3)*256))
    for n, (sr, vo, dst, so, io) in enumerate(loads):
        if n == ABAR:
            a("s_waitcnt lgkmcnt(0)")
            a("s_barrier")
        dd = depth if n < VFROM else VDEPTH
        if n >= dd:
            a(f"s_waitcnt vmcnt({dd-1})")
        a(f"s_add_u32 s7, s6, {so}")
        a(f"buffer_load_dwordx4 {vr(dst)}, v{vo}, {srd(sr)}, s7 offen offset:{io} nt")
        if NOPOLL and n == QTRIG:
            lds_inc(a, L_KISS)
    a(f"s_add_u32 s{S_TAG}, s{S_TAG}, 1")
    stamp(a, 1)
    if STRIP:
        a("s_waitcnt vmcnt(0)")
        stamp(a, 5)
        stamp_flush(a)
        a("s_endpgm")
    lds_inc(a, L_ISS)
    lds_wait(a, L_QRDY, 1)
    stamp(a, 2)
    a("v_and_b32 v2, 7, v0")
    a("v_lshlrev_b32 v2, 8, v2")
    a("v_lshrrev_b32 v3, 4, v0")
    a("v_lshl_add_u32 v2, v3, 4, v2")
    for c in range(4):
        a(f"ds_read_b128 {vr(Q0+4*c)}, v2 offset:{L_QS + 64*c}")
    a("s_waitcnt vmcnt(16) lgkmcnt(0)")
    stamp(a, 3)
    for kt in range(4):
        for c in range(4):
            cc = "0" if c == 0 else vr(S0+4*kt)
            a(f"v_mfma_f32_16x16x32_bf16 {vr(S0+4*kt)}, {vr(K0+16*kt+4*c)}, {vr(Q0+4*c)}, {cc}")
    a("s_nop 7")
    a("s_nop 1")
    for p in range(8):
        x, y = S0+2*p, S0+2*p+1
        a(f"v_cvt_pk_bf16_f32 v2, v{x}, v{y}")
        a(f"v_lshlrev_b32 v{x}, 16, v2")
        a(f"v_and_b32 v{y}, 0xffff0000, v2")
        a(f"v_mul_f32 v{x}, s{S_SCALE}, v{x}")
        a(f"v_mul_f32 v{y}, s{S_SCALE}, v{y}")
        a(f"v_cvt_pk_bf16_f32 v2, v{x}, v{y}")
        a(f"v_lshlrev_b32 v{x}, 16, v2")
        a(f"v_and_b32 v{y}, 0xffff0000, v2")
    a(f"v_max3_f32 v6, v{S0}, v{S0+1}, v{S0+2}")
    for i in range(3, 15, 2):
        a(f"v_max3_f32 v6, v6, v{S0+i}, v{S0+i+1}")
    a(f"v_max_f32 v6, v6, v{S0+15}")
    xg_reduce(a, 6, 7, "v_max_f32")
    a(f"v_mul_f32 v6, s{S_LOG2E}, v6")
    for i in range(16):
        a(f"v_fma_f32 v{S0+i}, v{S0+i}, s{S_LOG2E}, -v6")
    for i in range(16):
        a(f"v_exp_f32 v{S0+i}, v{S0+i}")
    a("s_nop 0")
    a(f"v_add_f32 v7, v{S0}, v{S0+1}")
    for i in range(2, 16):
        a(f"v_add_f32 v7, v7, v{S0+i}")
    xg_reduce(a, 7, 2, "v_add_f32")
    P0 = 56
    for u in range(2):
        for q in range(4):
            a(f"v_cvt_pk_bf16_f32 v{P0+4*u+q}, v{S0+8*u+2*q}, v{S0+8*u+2*q+1}")
    stamp(a, 4)
    O0, TB0 = 8, 40
    for u in range(2):
        a(f"s_waitcnt vmcnt({8 if u == 0 else 0})")
        for w in range(4):
            TB = TB0 + 8*(w % 2)
            for p in range(4):
                a(f"v_perm_b32 v{TB+p}, v{V0+32*u+4*(2*p+1)+w}, v{V0+32*u+4*(2*p)+w}, s{S_SELLO}")
            for p in range(4):
                a(f"v_perm_b32 v{TB+4+p}, v{V0+32*u+4*(2*p+1)+w}, v{V0+32*u+4*(2*p)+w}, s{S_SELHI}")
            a("s_nop 1")
            for h in range(2):
                t = 2*w+h
                cc = "0" if u == 0 else vr(O0+4*t)
                a(f"v_mfma_f32_16x16x32_bf16 {vr(O0+4*t)}, {vr(P0+4*u)}, {vr(TB+4*h)}, {cc}")
    a("s_nop 7")
    a("s_nop 1")
    R0 = 72
    for r in range(4):
        for t in range(8):
            a(f"v_mov_b32 v{R0+8*r+t}, v{O0+4*t+r}")
    a("v_lshrrev_b32 v2, 4, v0")
    a("v_lshlrev_b32 v2, 11, v2")
    a("v_and_b32 v3, 15, v0")
    a("v_lshl_add_u32 v2, v3, 5, v2")
    a("s_lshl_b32 s5, s3, 12")
    a("v_add_u32 v2, s5, v2")
    a("s_mov_b32 exec_lo, -1"); a("s_mov_b32 exec_hi, 0")
    for r in range(4):
        a(f"ds_write_b128 v2, {vr(R0+8*r)} offset:{L_OP + r*512}")
        a(f"ds_write_b128 v2, {vr(R0+8*r+4)} offset:{L_OP + r*512 + 16}")
    a("s_mov_b64 exec, -1")
    a("v_and_b32 v2, 7, v0")
    a("v_lshlrev_b32 v2, 3, v2")
    a("s_lshl_b32 s5, s3, 6")
    a("v_add_u32 v2, s5, v2")
    a(f"ds_write_b64 v2, v[6:7] offset:{L_ML}")
    stamp(a, 5)
    lds_inc(a, L_OCNT)
    lds_wait(a, L_OCNT, 8)
    stamp(a, 6)
    a("s_lshl_b32 s5, s3, 3")
    a("v_mov_b32 v2, s5")
    for w in range(8):
        a(f"ds_read_b64 v[{8+2*w}:{9+2*w}], v2 offset:{L_ML + w*64}")
    a("s_lshl_b32 s5, s3, 9")
    a("v_and_b32 v3, 31, v0")
    a("v_lshlrev_b32 v3, 4, v3")
    a("v_add_u32 v3, s5, v3")
    for w in range(8):
        a(f"ds_read_b128 {vr(24+4*w)}, v3 offset:{L_OP + w*4096}")
    tag_setup(a, 64)
    a("s_waitcnt lgkmcnt(8)")
    a("v_max3_f32 v4, v8, v10, v12")
    a("v_max3_f32 v4, v4, v14, v16")
    a("v_max3_f32 v4, v4, v18, v20")
    a("v_max_f32 v4, v4, v22")
    for w in range(8):
        a(f"v_sub_f32 v{8+2*w}, v{8+2*w}, v4")
    for w in range(8):
        a(f"v_exp_f32 v{8+2*w}, v{8+2*w}")
    a("s_waitcnt lgkmcnt(0)")
    a("v_mul_f32 v5, v8, v9")
    for e in range(4):
        a(f"v_mul_f32 v{60+e}, v8, v{24+e}")
    for w in range(1, 8):
        a(f"v_fmac_f32 v5, v{8+2*w}, v{9+2*w}")
        for e in range(4):
            a(f"v_fmac_f32 v{60+e}, v{8+2*w}, v{24+4*w+e}")
    tag_apply(a, 60, 64)
    a("s_lshr_b32 s5, s96, 4")
    a("s_and_b32 s5, s5, 3")
    a("s_lshl_b32 s5, s5, 3")
    a("s_add_u32 s5, s5, s3")
    a("s_lshl_b32 s5, s5, 2")
    a("s_lshr_b32 s6, s96, 6")
    a("s_add_u32 s5, s5, s6")
    a("s_lshl_b32 s5, s5, 4")
    a("s_and_b32 s6, s96, 15")
    a("s_add_u32 s5, s5, s6")
    a("s_lshl_b32 s5, s5, 10")
    a(f"s_add_u32 s5, s5, {OREC}")
    a("v_lshlrev_b32 v3, 4, v0")
    a(f"v_mov_b32 v6, s{S_TAG}")
    a(f"v_mov_b32 v7, s{S_TAG}")
    a("s_mov_b32 exec_lo, -1"); a("s_mov_b32 exec_hi, 0")
    a(f"buffer_store_dwordx4 v[60:63], v3, {srd(SRD_WS)}, s5 offen sc1")
    a("s_mov_b64 exec, 1")
    a(f"buffer_store_dwordx4 v[4:7], v3, {srd(SRD_WS)}, s5 offen offset:512 sc1")
    if OFLAG:
        a(f"s_sub_u32 s6, s5, {OREC}")
        a("s_lshr_b32 s6, s6, 8")
        a(f"s_add_u32 s6, s6, {FO}")
        a(f"buffer_store_dword v6, v3, {srd(SRD_WS)}, s6 offen sc1")
    a("s_mov_b64 exec, -1")
    lds_inc(a, L_REC)
    if OPAR:
        stamp(a, 7)
        a("s_lshr_b32 s12, s96, 3")
        a("s_lshl_b32 s12, s12, 16")
        a(f"s_add_u32 s12, s12, {OREC}")
        a("s_lshl_b32 s13, s3, 6")
        a("s_add_u32 s13, s13, s12")
        a("v_lshlrev_b32 v6, 10, v0")
        def body(fl):
            a(f"buffer_load_dwordx4 v[8:11], v6, {srd(SRD_WS)}, s12 offen offset:512 {fl}")
            for q in range(4):
                a(f"buffer_load_dwordx4 {vr(12+4*q)}, v6, {srd(SRD_WS)}, s13 offen offset:{16*q} {fl}")
            a("s_mov_b64 exec, -1")
            a("s_waitcnt vmcnt(0)")
            a(f"v_xor_b32 v30, s{S_TAG}, v10")
            for q in range(4):
                tag_check(a, 12+4*q, 30, 31, 32)
            a("v_cmp_ne_u32 vcc, 0, v30")
            a("s_nop 3")
            a("s_cmp_eq_u64 vcc, 0")
        lp = a.uniq("og"); dn = a.uniq("ogd")
        body("")
        if not NOSYNC:
            a(f"s_cbranch_scc1 {dn}")
            a(f"s_mov_b32 s{S_TMO}, 100000")
            a.label(lp)
            a(f"s_sleep {OSLEEP}")
            a("s_mov_b64 exec, vcc")
            body("sc1")
            a(f"s_cbranch_scc1 {dn}")
            a(f"s_sub_u32 s{S_TMO}, s{S_TMO}, 1")
            a(f"s_cmp_lg_u32 s{S_TMO}, 0")
            a(f"s_cbranch_scc1 {lp}")
            a.label(dn)
        stamp(a, 8)
        a("v_mov_b32 v30, v8")
        row_reduce_max(a, 30)
        a("v_sub_f32 v8, v8, v30")
        a("v_exp_f32 v8, v8")
        a("s_nop 0")
        a("v_mul_f32 v9, v8, v9")
        row_reduce_add(a, 9)
        a("v_rcp_f32 v9, v9")
        a("s_nop 0")
        a("v_mul_f32 v8, v8, v9")
        for e in range(16):
            a(f"v_mul_f32 v{12+e}, v{12+e}, v8")
        for r in (8, 4, 2, 1):
            for e in range(16):
                a(f"v_add_f32_dpp v{12+e}, v{12+e}, v{12+e} row_ror:{r} row_mask:0xf bank_mask:0xf")
        for q in range(8):
            a(f"v_cvt_pk_bf16_f32 v{32+q}, v{12+2*q}, v{13+2*q}")
        a("v_lshrrev_b32 v2, 4, v0")
        a("v_lshlrev_b32 v2, 8, v2")
        a("s_lshl_b32 s5, s3, 5")
        a("v_add_u32 v2, s5, v2")
        a("s_mov_b32 exec_lo, 0x00010001")
        a("s_mov_b32 exec_hi, 0x00010001")
        a(f"ds_write_b128 v2, v[32:35] offset:{L_AF}")
        a(f"ds_write_b128 v2, v[36:39] offset:{L_AF+16}")
        a("s_mov_b64 exec, -1")
        lds_inc(a, L_OAF)
        stamp(a, 9)
        stamp_flush(a)
        a("s_endpgm")
    stamp(a, 7)
    stamp_flush(a)
    a("s_endpgm")

    a.label("L_notattn")
    if PRIO:
        a("s_setprio 3")
    a("s_cmp_eq_u32 s3, 11")
    a("s_cbranch_scc1 L_comm")
    a("s_cmp_eq_u32 s3, 8")
    a("s_cbranch_scc1 L_w8")
    a("s_cmp_lt_u32 s2, 224")
    a("s_cbranch_scc1 L_ffn")
    a("s_waitcnt lgkmcnt(0)")
    a("s_barrier")
    a("s_endpgm")
    a.label("L_ffn")
    a("s_cmp_eq_u32 s3, 9")
    a("s_cselect_b32 s52, s28, s30")
    a("s_cselect_b32 s53, s29, s31")
    a(f"s_mov_b32 s54, {1024*3584*2}")
    a("s_mov_b32 s55, 0x00020000")
    a("s_lshr_b32 s8, s2, 3")
    a("s_and_b32 s9, s2, 7")
    a("s_lshl_b32 s10, s9, 8")
    ln_issue(a, 10)
    wjob_voff(a, 7168)
    a(f"s_mul_i32 s11, s9, {128*7168}")
    a("s_lshl_b32 s12, s8, 8")
    a("s_add_u32 s11, s11, s12")
    a("s_sub_u32 s13, s3, 8")
    a("s_lshl_b32 s13, s13, 15")
    a(f"s_add_u32 s13, s13, {L_WT}")
    def mid_ffn():
        a(f"s_add_u32 s{S_TAG}, s{S_TAG}, 1")
        a(f"s_waitcnt vmcnt({min(WPACE,32)})")
        stamp(a, 1)
        a("v_mov_b32 v160, v1")
        ln_compute(a)
        a("v_mov_b32 v1, v160")
        stamp(a, 2)
    def gate_ffn():
        if GATE_GU:
            lds_wait(a, L_QJ, 1)
    wjob_issue(a, 7168, 11, None, pace=WPACE, barrier=True, dyn=13, mid=mid_ffn, gate=gate_ffn, bar_at=FBAR)
    a("s_waitcnt vmcnt(0)")
    if STRIP == 1:
        a("s_endpgm")
    a("v_lshlrev_b32 v2, 4, v0")
    a("v_add_u32 v3, s13, v2")
    stamp(a, 3)
    wjob_consume_dyn(a)
    a("s_sub_u32 s12, s3, 9")
    a("s_mul_i32 s14, s12, 458752")
    a("s_mul_i32 s15, s9, 57344")
    a("s_add_u32 s14, s14, s15")
    a("s_lshl_b32 s15, s8, 9")
    a("s_add_u32 s14, s14, s15")
    a(f"s_add_u32 s14, s14, {GUP}")
    a("s_lshl_b32 s15, s8, 4")
    a("s_lshl_b32 s12, s12, 3")
    a("s_add_u32 s15, s15, s12")
    a("s_add_u32 s15, s15, s9")
    a("s_lshl_b32 s15, s15, 2")
    a(f"s_add_u32 s15, s15, {FGU}")
    wjob_store(a, 14, 14336, 15, flag=not NOPOLL)
    stamp(a, 4)
    if STRIP:
        a("s_endpgm")
    a("s_cmp_eq_u32 s3, 9")
    a("s_cbranch_scc1 L_down")
    stamp_flush(a)
    a("s_endpgm")

    a.label("L_down")
    a("s_lshr_b32 s8, s97, 3")
    a("s_and_b32 s9, s97, 7")
    mk_srd(a, SRD_W, 32, 3584*1024*2)
    a("s_lshl_b32 s12, s8, 6")
    a(f"s_add_u32 s12, s12, {FGU}")
    a("v_lshlrev_b32 v6, 2, v0")
    if NOPOLL:
        lds_wait(a, L_ISS, 8)
    else:
        poll_flags(a, 6, 12, 7, execmask="0xffff")
    stamp(a, 5)
    a("v_lshrrev_b32 v2, 4, v0")
    a("v_mul_u32_u24 v2, 14336, v2")
    a("v_and_b32 v3, 15, v0")
    a("v_lshl_add_u32 v2, v3, 4, v2")
    a("s_lshl_b32 s12, s8, 9")
    a(f"s_add_u32 s12, s12, {GUP}")
    G = 8
    def emit(fl):
        for mat in range(2):
            for sp in range(8):
                a(f"s_add_u32 s5, s12, {mat*458752 + sp*57344}")
                a(f"buffer_load_dwordx4 {vr(G+64*mat+8*sp)}, v2, {srd(SRD_WS)}, s5 offen {fl}")
                a(f"buffer_load_dwordx4 {vr(G+64*mat+8*sp+4)}, v2, {srd(SRD_WS)}, s5 offen offset:256 {fl}")
        for q in range(32):
            a(f"s_waitcnt vmcnt({31-q})")
            tag_check(a, G+4*q, 136, 137, 138, first=(q == 0))
    gather(a, emit, 136)
    for mat in range(2):
        for sp in range(1, 8):
            for e in range(8):
                a(f"v_add_f32 v{G+64*mat+e}, v{G+64*mat+e}, v{G+64*mat+8*sp+e}")
    c1 = 0.044715
    c2 = -2.0 * 0.7978845608028654 * 1.4426950408889634
    a(f"s_mov_b32 s12, {f32hex(c1)}")
    a(f"s_mov_b32 s13, {f32hex(c2)}")
    for e in range(8):
        g, u, t = G+e, G+64+e, 16+e
        rne(a, g, g)
        rne(a, u, u)
        a(f"v_mul_f32 v{t}, v{g}, v{g}")
        a(f"v_mul_f32 v{t}, v{t}, v{g}")
        a(f"v_fma_f32 v{t}, v{t}, s12, v{g}")
        a(f"v_mul_f32 v{t}, s13, v{t}")
        a(f"v_exp_f32 v{t}, v{t}")
        a("s_nop 0")
        a(f"v_add_f32 v{t}, 1.0, v{t}")
        a(f"v_rcp_f32 v{t}, v{t}")
        a("s_nop 0")
        a(f"v_mul_f32 v{t}, v{t}, v{g}")
        rne(a, t, t)
        a(f"v_mul_f32 v{t}, v{t}, v{u}")
    for q in range(4):
        a(f"v_cvt_pk_bf16_f32 v{24+q}, v{16+2*q}, v{17+2*q}")
    stamp(a, 6)
    af_via_lds(a, 24, L_AF + 1024)
    wjob_voff(a, 2048)
    lds_wait(a, L_GO, 1)
    a(f"s_mul_i32 s11, s8, {128*2048}")
    a("s_lshl_b32 s12, s9, 8")
    a("s_add_u32 s11, s11, s12")
    wjob_issue(a, 2048, 11, L_WT + 0x8000, pace=TPACE)
    a("s_waitcnt vmcnt(0)")
    stamp(a, 8)
    wjob_consume(a, L_WT + 0x8000)
    a("s_lshl_b32 s14, s9, 17")
    a("s_add_u32 s15, s8, 32")
    a("s_lshl_b32 s12, s15, 11")
    a("s_add_u32 s14, s14, s12")
    a(f"s_add_u32 s14, s14, {SP}")
    a("s_lshl_b32 s12, s9, 6")
    a("s_add_u32 s15, s15, s12")
    a("s_lshl_b32 s15, s15, 2")
    a(f"s_add_u32 s15, s15, {FS}")
    wjob_store(a, 14, 512, 15, flag=not FDIRECT)
    stamp(a, 7)
    stamp_flush(a)
    a("s_endpgm")

    a.label("L_w8")
    mk_srd(a, SRD_W, 22, 1024*4096*2)
    a("s_lshr_b32 s8, s2, 3")
    a("s_and_b32 s9, s2, 7")
    a("s_lshl_b32 s10, s9, 8")
    ln_issue(a, 10)
    wjob_voff(a, 8192)
    a(f"s_mul_i32 s11, s9, {128*8192}")
    a("s_lshl_b32 s12, s8, 8")
    a("s_add_u32 s11, s11, s12")
    def mid_q():
        a(f"s_add_u32 s{S_TAG}, s{S_TAG}, 1")
        a(f"s_waitcnt vmcnt({min(QPACE,32)})")
        stamp(a, 1)
        ln_compute(a)
        stamp(a, 2)
    wjob_issue(a, 8192, 11, L_WT, pace=QPACE, barrier=True, mid=mid_q, bar_at=32)
    a("s_waitcnt vmcnt(0)")
    if GATE_GU:
        lds_inc(a, L_QJ)
    if STRIP == 1:
        a("s_endpgm")
    stamp(a, 3)
    wjob_consume(a, L_WT)
    a("s_lshl_b32 s14, s9, 16")
    a("s_lshl_b32 s15, s8, 9")
    a("s_add_u32 s14, s14, s15")
    a(f"s_add_u32 s14, s14, {QP}")
    a("s_lshl_b32 s15, s2, 2")
    a(f"s_add_u32 s15, s15, {FQ}")
    wjob_store(a, 14, 16384, 15, flag=not NOPOLL)
    if QWAIT:
        lds_inc(a, L_QJ)
    stamp(a, 4)
    if STRIP:
        a("s_endpgm")
    a("s_lshr_b32 s8, s96, 3")
    a("s_and_b32 s9, s96, 7")
    mk_srd(a, SRD_W, 24, 4096*1024*2)
    wjob_voff(a, 2048)
    a("s_lshl_b32 s12, s8, 16")
    a(f"s_add_u32 s12, s12, {OREC}")
    a("v_lshlrev_b32 v6, 10, v0")
    a("v_add_u32 v6, 512, v6")
    if OPAR:
        lds_wait(a, L_REC, GOREC)
        stamp(a, 8)
        lds_inc(a, L_GO)
        a(f"s_mul_i32 s11, s8, {128*2048}")
        a("s_lshl_b32 s13, s9, 8")
        a("s_add_u32 s11, s11, s13")
        wjob_issue(a, 2048, 11, L_WT, pace=TPACE)
        a("s_waitcnt vmcnt(0)")
        stamp(a, 5)
        lds_wait(a, L_OAF, 8)
        stamp(a, 6)
        a("v_and_b32 v2, 3, v0")
        a("v_lshlrev_b32 v2, 8, v2")
        a("v_lshrrev_b32 v3, 4, v0")
        a("v_lshlrev_b32 v3, 4, v3")
        a("v_add_u32 v2, v2, v3")
        for tb in range(4):
            a(f"ds_read_b128 {vr(W_AF+4*tb)}, v2 offset:{L_AF + 64*tb}")
        a("s_waitcnt lgkmcnt(0)")
    else:
        a("s_lshl_b32 s10, s8, 8")
        a(f"s_add_u32 s10, s10, {FO}")
        a("v_lshlrev_b32 v7, 2, v0")
        lds_wait(a, L_REC, 8)
        if not NOSYNC:
            lp = a.uniq("pa"); dn = a.uniq("pad")
            a(f"s_mov_b32 s{S_TMO}, 100000")
            a.label(lp)
            if OFLAG:
                a(f"buffer_load_dword v138, v7, {srd(SRD_WS)}, s10 offen sc1")
            else:
                a(f"buffer_load_dwordx4 {vr(136)}, v6, {srd(SRD_WS)}, s12 offen sc1")
            a("s_waitcnt vmcnt(0)")
            a(f"v_cmp_eq_u32 vcc, s{S_TAG}, v138")
            a("s_nop 3")
            a("s_bcnt1_i32_b64 s4, vcc")
            a(f"s_cmp_ge_u32 s4, {THR}")
            a(f"s_cbranch_scc1 {dn}")
            a(f"s_sleep {PSLEEP}")
            a(f"s_sub_u32 s{S_TMO}, s{S_TMO}, 1")
            a(f"s_cmp_lg_u32 s{S_TMO}, 0")
            a(f"s_cbranch_scc1 {lp}")
            a.label(dn)
        stamp(a, 8)
        lds_inc(a, L_GO)
        a(f"s_mul_i32 s11, s8, {128*2048}")
        a("s_lshl_b32 s13, s9, 8")
        a("s_add_u32 s11, s11, s13")
        wjob_issue(a, 2048, 11, L_WT, pace=TPACE)
        if OFLAG:
            poll_flags(a, 7, 10, 138)
            poll_flags(a, 6, 12, 136, width=4, tagreg_idx=2)
        else:
            poll_flags(a, 6, 12, 136, width=4, tagreg_idx=2)
        stamp(a, 5)
        a("v_mov_b32 v138, v136")
        row_reduce_max(a, 138)
        a("v_sub_f32 v136, v136, v138")
        a("v_exp_f32 v136, v136")
        a("s_nop 0")
        a("v_mul_f32 v137, v136, v137")
        row_reduce_add(a, 137)
        a("v_rcp_f32 v137, v137")
        a("s_nop 0")
        a("v_mul_f32 v136, v136, v137")
        a("v_lshrrev_b32 v2, 4, v0")
        a("v_lshlrev_b32 v2, 14, v2")
        a("v_and_b32 v3, 15, v0")
        a("v_lshl_add_u32 v2, v3, 5, v2")
        for s in range(16):
            a(f"v_mov_b32_dpp v{140+s}, v136 row_newbcast:{s} row_mask:0xf bank_mask:0xf")
        def emit(fl):
            for s in range(16):
                a(f"s_add_u32 s5, s12, {s*1024}")
                a(f"buffer_load_dwordx4 {vr(8+8*s)}, v2, {srd(SRD_WS)}, s5 offen {fl}")
                a(f"buffer_load_dwordx4 {vr(8+8*s+4)}, v2, {srd(SRD_WS)}, s5 offen offset:16 {fl}")
            for q in range(32):
                a(f"s_waitcnt vmcnt({31-q})")
                tag_check(a, 8+4*q, 136, 137, 138, first=(q == 0))
        gather(a, emit, 136)
        for e in range(8):
            a(f"v_mul_f32 v{8+e}, v{8+e}, v140")
        for s in range(1, 16):
            for e in range(8):
                a(f"v_fmac_f32 v{8+e}, v{8+8*s+e}, v{140+s}")
        for q in range(4):
            a(f"v_cvt_pk_bf16_f32 v{24+q}, v{8+2*q}, v{9+2*q}")
        stamp(a, 6)
        af_via_lds(a, 24, L_AF)
    wjob_consume(a, L_WT)
    a("s_lshl_b32 s14, s9, 17")
    a("s_lshl_b32 s12, s8, 11")
    a("s_add_u32 s14, s14, s12")
    a(f"s_add_u32 s14, s14, {SP}")
    a("s_lshl_b32 s12, s9, 6")
    a("s_add_u32 s15, s8, s12")
    a("s_lshl_b32 s15, s15, 2")
    a(f"s_add_u32 s15, s15, {FS}")
    wjob_store(a, 14, 512, 15, flag=not FDIRECT)
    stamp(a, 7)
    stamp_flush(a)
    a("s_endpgm")

    a.label("L_comm")
    if DBGT:
        a("s_memrealtime s[98:99]")
    a("v_mov_b32 v2, 0")
    a("v_lshlrev_b32 v3, 2, v0")
    a("ds_write_b32 v3, v2")
    a("s_waitcnt lgkmcnt(0)")
    a("s_barrier")
    a(f"s_add_u32 s{S_TAG}, s{S_TAG}, 1")
    if STRIP in (1, 2):
        a("s_endpgm")
    a("s_lshr_b32 s8, s96, 4")
    a("s_and_b32 s8, s8, 3")
    a("s_lshr_b32 s9, s96, 6")
    a("s_lshl_b32 s12, s8, 8")
    a(f"s_add_u32 s12, s12, {FQ}")
    if NOPOLL:
        lds_wait(a, L_KISS, QTHR)
    else:
        if QWAIT:
            lds_wait(a, L_QJ, 1)
        a("v_lshlrev_b32 v6, 2, v0")
        poll_flags(a, 6, 12, 7)
    stamp(a, 1)
    if NOGATH:
        a("s_endpgm")
    a("s_lshl_b32 s12, s9, 14")
    a("s_lshl_b32 s13, s8, 12")
    a("s_add_u32 s12, s12, s13")
    a(f"s_add_u32 s12, s12, {QP}")
    a("v_lshlrev_b32 v2, 4, v0")
    def emit(fl):
        for sp in range(8):
            a(f"s_add_u32 s5, s12, {sp*65536}")
            for q in range(4):
                a(f"buffer_load_dwordx4 {vr(8+16*sp+4*q)}, v2, {srd(SRD_WS)}, s5 offen offset:{1024*q} {fl}")
        for q in range(32):
            a(f"s_waitcnt vmcnt({31-q})")
            tag_check(a, 8+4*q, 136, 137, 138, first=(q == 0))
    gather(a, emit, 136)
    for sp in range(1, 8):
        for e in range(16):
            a(f"v_add_f32 v{8+e}, v{8+e}, v{8+16*sp+e}")
    for q in range(8):
        a(f"v_cvt_pk_bf16_f32 v{24+q}, v{8+2*q}, v{9+2*q}")
    a("v_lshrrev_b32 v2, 5, v0")
    a("v_lshlrev_b32 v2, 8, v2")
    a("v_and_b32 v3, 15, v0")
    a("v_lshl_add_u32 v2, v3, 4, v2")
    a("v_bfe_u32 v3, v0, 4, 1")
    a("v_lshl_add_u32 v2, v3, 3, v2")
    for q in range(4):
        a(f"ds_write_b64 v2, v[{24+2*q}:{25+2*q}] offset:{L_QS + 512*q}")
    lds_inc(a, L_QRDY)
    stamp(a, 2)
    if STRIP:
        a("s_endpgm")
    a(f"s_cmp_lt_u32 s2, {128 if F128 else 32}")
    a("s_cbranch_scc1 L_final")
    stamp_flush(a)
    a("s_endpgm")
    a.label("L_final")
    if F128:
        final128(a)
    else:
        final32(a)
    a("s_mov_b64 exec, -1")
    a("s_cmp_lg_u32 s2, 0")
    a("s_cbranch_scc1 L_end")
    a("s_mov_b64 exec, 1")
    a("v_mov_b32 v2, 0")
    a(f"v_mov_b32 v3, s{S_TAG}")
    a(f"buffer_store_dword v3, v2, {srd(SRD_WS)}, 0 offen sc1")
    if DBGT:
        a("s_memrealtime s[94:95]")
        a("s_waitcnt lgkmcnt(0)")
        a("s_sub_u32 s94, s94, s98")
        mk_srd(a, 84, 36, 256)
        a("v_mov_b32 v3, s94")
        a("buffer_store_dword v3, v2, s[84:87], 0 offen")
    a.label("L_end")
    a("s_endpgm")

    out += a.l
    out += ['.section .rodata,"a"', ".p2align 6", f".amdhsa_kernel {NAME}",
            "  .amdhsa_next_free_vgpr 168", "  .amdhsa_next_free_sgpr 100", "  .amdhsa_accum_offset 168",
            "  .amdhsa_group_segment_fixed_size 0", "  .amdhsa_kernarg_size 96", "  .amdhsa_user_sgpr_count 2",
            "  .amdhsa_user_sgpr_kernarg_segment_ptr 1", "  .amdhsa_system_sgpr_workgroup_id_x 1",
            ".end_amdhsa_kernel"]
    open(path, "w").write("\n".join(out) + "\n")

def wjob_consume_dyn(a):
    def rd(tb, T):
        for i in range(8):
            a(f"ds_read_b128 {vr(T+4*i)}, v3 offset:{(tb*8+i)*1024}")
    rd(0, W_T0)
    for tb in range(4):
        T = W_T0 if tb % 2 == 0 else W_T1
        if tb < 3:
            rd(tb+1, W_T1 if tb % 2 == 0 else W_T0)
            a("s_waitcnt lgkmcnt(8)")
        else:
            a("s_waitcnt lgkmcnt(0)")
        for w in range(4):
            TB = W_TB + 8*(w % 2)
            for p in range(4):
                a(f"v_perm_b32 v{TB+p}, v{T+4*(2*p+1)+w}, v{T+4*(2*p)+w}, s{S_SELLO}")
            for p in range(4):
                a(f"v_perm_b32 v{TB+4+p}, v{T+4*(2*p+1)+w}, v{T+4*(2*p)+w}, s{S_SELHI}")
            a("s_nop 1")
            for h in range(2):
                t = 2*w + h
                c = "0" if tb == 0 else vr(W_ACC+4*t)
                a(f"v_mfma_f32_16x16x32_bf16 {vr(W_ACC+4*t)}, {vr(W_AF+4*tb)}, {vr(TB+4*h)}, {c}")

if __name__ == "__main__":
    depth = int(sys.argv[2]) if len(sys.argv) > 2 else 8
    STAMPS = "stamps" in sys.argv
    for x in sys.argv[3:]:
        if "=" in x:
            k, v = x.split("=")
            globals()[k] = int(v) if v.lstrip('-').isdigit() else v.replace('_', ' ').strip()
    gen(sys.argv[1], depth)
```

```python
import struct, sys

NAME = "recurrent_scan__gqa_block_cached__glu_gated_geglu__decode_kernel"

def f32hex(x):
    return "0x%08x" % struct.unpack("<I", struct.pack("<f", x))[0]

EPOCH = 0
FQ = 0x1000
FGU = 0x2000
FO = 0x8000
FS = 0x3000
QP = 0x100000
GUP = 0x200000
OREC = 0x400000
SP = 0x800000

L_QRDY = 0
L_OCNT = 4
L_ISS = 8
L_QJ = 12
L_OAF = 36
L_KISS = 24
L_GO = 16
L_REC = 20
L_ML = 0x100
L_QS = 0x400
L_AF = 0xC00
L_OP = 0x2000
L_WT = 0xA000
LDS_BYTES = 0xA000 + 3 * 0x8000

S_TAG = 40
S_TMO = 41
SRD_K, SRD_V, SRD_W, SRD_WS, SRD_X, SRD_OUT = 44, 48, 52, 56, 60, 64
S_SELLO, S_SELHI, S_SCALE, S_LOG2E = 68, 69, 70, 71

class A:
    def __init__(self):
        self.l = []
        self.n = 0
    def __call__(self, s):
        self.l.append("    " + s)
    def label(self, s):
        self.l.append(s + ":")
    def uniq(self, p):
        self.n += 1
        return f"L_{p}_{self.n}"

def vr(b, n=4):
    return f"v[{b}:{b+n-1}]"

def srd(b):
    return f"s[{b}:{b+3}]"

def mk_srd(a, d, ptr, nbytes):
    a(f"s_mov_b32 s{d}, s{ptr}")
    a(f"s_mov_b32 s{d+1}, s{ptr+1}")
    a(f"s_mov_b32 s{d+2}, {nbytes}")
    a(f"s_mov_b32 s{d+3}, 0x00020000")

def lds_wait(a, addr, n, vtmp=2, vz=3):
    lp = a.uniq("lw"); dn = a.uniq("lwd")
    a(f"s_mov_b32 s{S_TMO}, 400000")
    a(f"v_mov_b32 v{vz}, 0")
    a.label(lp)
    a(f"ds_read_b32 v{vtmp}, v{vz} offset:{addr}")
    a("s_waitcnt lgkmcnt(0)")
    a(f"v_readfirstlane_b32 s4, v{vtmp}")
    a("s_nop 3")
    a(f"s_cmp_ge_u32 s4, {n}")
    a(f"s_cbranch_scc1 {dn}")
    a("s_sleep 1")
    a(f"s_sub_u32 s{S_TMO}, s{S_TMO}, 1")
    a(f"s_cmp_lg_u32 s{S_TMO}, 0")
    a(f"s_cbranch_scc1 {lp}")
    a.label(dn)

def lds_inc(a, addr, v1=2, v2=3):
    a("s_mov_b64 exec, 1")
    a(f"v_mov_b32 v{v1}, 0")
    a(f"v_mov_b32 v{v2}, 1")
    a(f"ds_add_u32 v{v1}, v{v2} offset:{addr}")
    a("s_mov_b64 exec, -1")

def poll_flags(a, voff, soff_reg, vdst, width=1, tagreg_idx=0, execmask=None):
    lp = a.uniq("pl"); dn = a.uniq("pld")
    if NOSYNC:
        a("s_waitcnt vmcnt(0)")
        return
    a(f"s_mov_b32 s{S_TMO}, 100000")
    if execmask is not None:
        a(f"s_mov_b64 exec, {execmask}")
    a.label(lp)
    if width == 1:
        a(f"buffer_load_dword v{vdst}, v{voff}, {srd(SRD_WS)}, s{soff_reg} offen sc1")
    else:
        a(f"buffer_load_dwordx4 {vr(vdst)}, v{voff}, {srd(SRD_WS)}, s{soff_reg} offen sc1")
    a("s_waitcnt vmcnt(0)")
    a(f"v_cmp_ne_u32 vcc, s{S_TAG}, v{vdst+tagreg_idx}")
    a("s_nop 3")
    a("s_cmp_eq_u64 vcc, 0")
    a(f"s_cbranch_scc1 {dn}")
    a(f"s_sleep {PSLEEP}")
    a(f"s_sub_u32 s{S_TMO}, s{S_TMO}, 1")
    a(f"s_cmp_lg_u32 s{S_TMO}, 0")
    a(f"s_cbranch_scc1 {lp}")
    a.label(dn)
    if execmask is not None:
        a("s_mov_b64 exec, -1")

STAMPS = False
WPACE = 64
TEARLY = 0
DBGT = 0
OFLAG = 0
OPAR = 0
OSLEEP = 2
GOREC = 8
F128 = 0
FDIRECT = 0
QTHR = 8
NOPOLL = 0
QTRIG = 16
RSLEEP = 8
STF = 'sc1'
NOFLAG = 0
NOGATH = 0
THR = 32
QWAIT = 0
VDEPTH = 4
VFROM = 16
STRIP = 0
TLATE = 0
L2G = 1
FBAR = 2
PRIO = 0
ABAR = 2
GATE_GU = 0
NOSYNC = 0
PSLEEP = 2
QPACE = 64
TPACE = 64
STAMP_BASE = 0xF00000
def stamp(a, idx):
    if not STAMPS: return
    a("s_memrealtime s[90:91]")
    a("s_waitcnt lgkmcnt(0)")
    a(f"s_mov_b32 s{72+idx}, s90")

def stamp_flush(a):
    if not STAMPS: return
    a("s_mov_b64 exec, 1")
    a("s_lshl_b32 s92, s2, 10")
    a("s_lshl_b32 s93, s3, 6")
    a("s_add_u32 s92, s92, s93")
    a(f"s_add_u32 s92, s92, {STAMP_BASE}")
    a("v_mov_b32 v1, 0")
    for q in range(4):
        for e in range(4):
            a(f"v_mov_b32 v{8+4*q+e}, s{72+4*q+e}")
        a(f"buffer_store_dwordx4 v[{8+4*q}:{11+4*q}], v1, {srd(SRD_WS)}, s92 offen offset:{16*q}")

S_MFF, S_PA, S_PB = 42, 43, 88
def tag_setup(a, vt):
    for i in range(4):
        a(f"v_mov_b32 v{vt+i}, s{S_TAG}")
        if i:
            a(f"v_lshrrev_b32 v{vt+i}, {8*i}, v{vt+i}")

def tag_apply(a, R, vt):
    for i in range(4):
        a(f"v_bfi_b32 v{R+i}, s{S_MFF}, v{vt+i}, v{R+i}")

def tag_check(a, R, acc, t1, t2, first=False):
    a(f"v_perm_b32 v{t1}, v{R+1}, v{R}, s{S_PA}")
    a(f"v_perm_b32 v{t2}, v{R+3}, v{R+2}, s{S_PB}")
    a(f"v_or_b32 v{t1}, v{t1}, v{t2}")
    if first:
        a(f"v_xor_b32 v{acc}, s{S_TAG}, v{t1}")
    else:
        a(f"v_xor_b32 v{t1}, s{S_TAG}, v{t1}")
        a(f"v_or_b32 v{acc}, v{acc}, v{t1}")

def gather(a, emit, acc):
    lp = a.uniq("gr"); dn = a.uniq("grd")
    emit("" if L2G else "sc1")
    if NOSYNC: return
    a(f"v_cmp_ne_u32 vcc, 0, v{acc}")
    a("s_nop 3")
    a("s_cmp_eq_u64 vcc, 0")
    a(f"s_cbranch_scc1 {dn}")
    a(f"s_mov_b32 s{S_TMO}, 100000")
    a.label(lp)
    emit("sc1")
    a(f"v_cmp_ne_u32 vcc, 0, v{acc}")
    a("s_nop 3")
    a("s_cmp_eq_u64 vcc, 0")
    a(f"s_cbranch_scc1 {dn}")
    a(f"s_sleep {RSLEEP}")
    a(f"s_sub_u32 s{S_TMO}, s{S_TMO}, 1")
    a(f"s_cmp_lg_u32 s{S_TMO}, 0")
    a(f"s_cbranch_scc1 {lp}")
    a.label(dn)

def gather_retry_begin(a):
    lp = a.uniq("gr")
    a(f"s_mov_b32 s{S_TMO}, 100000")
    a.label(lp)
    return lp

def gather_retry_end(a, lp, acc):
    dn = a.uniq("grd")
    if NOSYNC: return
    a(f"v_cmp_ne_u32 vcc, 0, v{acc}")
    a("s_nop 3")
    a("s_cmp_eq_u64 vcc, 0")
    a(f"s_cbranch_scc1 {dn}")
    a("s_sleep 1")
    a(f"s_sub_u32 s{S_TMO}, s{S_TMO}, 1")
    a(f"s_cmp_lg_u32 s{S_TMO}, 0")
    a(f"s_cbranch_scc1 {lp}")
    a.label(dn)

def rne(a, dst, src):
    a(f"v_cvt_pk_bf16_f32 v{dst}, v{src}, v{src}")
    a(f"v_lshlrev_b32 v{dst}, 16, v{dst}")

def row_reduce_add(a, v):
    for r in (8, 4, 2, 1):
        a("s_nop 1")
        a(f"v_add_f32_dpp v{v}, v{v}, v{v} row_ror:{r} row_mask:0xf bank_mask:0xf")

def row_reduce_max(a, v):
    for r in (8, 4, 2, 1):
        a("s_nop 1")
        a(f"v_max_f32_dpp v{v}, v{v}, v{v} row_ror:{r} row_mask:0xf bank_mask:0xf")

def xg_reduce(a, v, t, op):
    a(f"v_mov_b32 v{t}, v{v}")
    a("s_nop 1")
    a(f"v_permlane32_swap_b32 v{v}, v{t}")
    a("s_nop 1")
    a(f"{op} v{v}, v{v}, v{t}")
    a(f"v_mov_b32 v{t}, v{v}")
    a("s_nop 1")
    a(f"v_permlane16_swap_b32 v{v}, v{t}")
    a("s_nop 1")
    a(f"{op} v{v}, v{v}, v{t}")

W_T0, W_T1, W_ACC, W_TB, W_AF, W_M2 = 8, 40, 72, 104, 120, 136

def wjob_issue(a, rs, s_base, lds_slot, pace=64, barrier=False, dyn=None, mid=None, gate=None, bar_at=2):
    n = 0
    done = False
    for tb in range(4):
        for i in range(8):
            if barrier and n == bar_at:
                a("s_waitcnt lgkmcnt(0)")
                a("s_barrier")
                if gate: gate()
            if n == pace:
                if mid: mid()
                done = True
            if n >= pace:
                a(f"s_waitcnt vmcnt({pace-1})")
            a(f"s_add_u32 s5, s{s_base}, {(32*tb+i)*rs}")
            if dyn is None:
                a(f"s_mov_b32 m0, {lds_slot + (tb*8+i)*1024}")
            else:
                a(f"s_add_u32 s14, s{dyn}, {(tb*8+i)*1024}")
                a("s_mov_b32 m0, s14")
            a("s_nop 0")
            a(f"buffer_load_dwordx4 v1, {srd(SRD_W)}, s5 offen nt lds")
            n += 1
    if barrier and bar_at >= 32:
        a("s_waitcnt lgkmcnt(0)")
        a("s_barrier")
    if not done:
        if mid: mid()

def wjob_voff(a, rs):
    a("v_lshrrev_b32 v2, 4, v0")
    a(f"s_mov_b32 s5, {8*rs}")
    a("v_mul_lo_u32 v2, v2, s5")
    a("v_and_b32 v1, 15, v0")
    a("v_lshlrev_b32 v1, 4, v1")
    a("v_add_u32 v1, v1, v2")

def wjob_consume(a, lds_slot):
    a("v_lshlrev_b32 v2, 4, v0")
    def rd(tb, T):
        for i in range(8):
            off = lds_slot + (tb*8+i)*1024
            a(f"ds_read_b128 {vr(T+4*i)}, v3 offset:{(tb*8+i)*1024}")
    a(f"v_add_u32 v3, {lds_slot}, v2")
    rd(0, W_T0)
    for tb in range(4):
        T = W_T0 if tb % 2 == 0 else W_T1
        if tb < 3:
            rd(tb+1, W_T1 if tb % 2 == 0 else W_T0)
            a("s_waitcnt lgkmcnt(8)")
        else:
            a("s_waitcnt lgkmcnt(0)")
        for w in range(4):
            TB = W_TB + 8*(w % 2)
            for p in range(4):
                a(f"v_perm_b32 v{TB+p}, v{T+4*(2*p+1)+w}, v{T+4*(2*p)+w}, s{S_SELLO}")
            for p in range(4):
                a(f"v_perm_b32 v{TB+4+p}, v{T+4*(2*p+1)+w}, v{T+4*(2*p)+w}, s{S_SELHI}")
            a("s_nop 1")
            for h in range(2):
                t = 2*w + h
                c = "0" if tb == 0 else vr(W_ACC+4*t)
                a(f"v_mfma_f32_16x16x32_bf16 {vr(W_ACC+4*t)}, {vr(W_AF+4*tb)}, {vr(TB+4*h)}, {c}")

def wjob_store(a, s_out, mstride, s_flag, flag=True):
    tag_setup(a, W_M2)
    a("s_nop 7")
    R = W_T0
    for m in range(4):
        for t in range(8):
            a(f"v_bfi_b32 v{R+8*m+t}, s{S_MFF}, v{W_M2+(t&3)}, v{W_ACC+4*t+m}")
    a("v_lshlrev_b32 v2, 4, v0")
    a("s_mov_b64 exec, 0xffff")
    for m in range(4):
        a(f"s_add_u32 s5, s{s_out}, {m*mstride}")
        a(f"buffer_store_dwordx4 {vr(R+8*m)}, v2, {srd(SRD_WS)}, s5 offen {STF}")
        a(f"buffer_store_dwordx4 {vr(R+8*m+4)}, v2, {srd(SRD_WS)}, s5 offen offset:256 {STF}")
    a("s_mov_b64 exec, 1")
    a("v_mov_b32 v2, 0")
    if flag and not NOFLAG:
        a(f"buffer_store_dword v{W_M2}, v2, {srd(SRD_WS)}, s{s_flag} offen {STF}")
    a("s_mov_b64 exec, -1")

def ln_issue(a, s_r0x2):
    a("v_lshrrev_b32 v2, 4, v0")
    a("v_lshlrev_b32 v2, 11, v2")
    a("v_and_b32 v3, 15, v0")
    a("v_lshlrev_b32 v3, 7, v3")
    a("v_add_u32 v2, v2, v3")
    for k in range(8):
        a(f"buffer_load_dwordx4 {vr(W_T0+4*k)}, v2, {srd(SRD_X)}, 0 offen offset:{16*k}")
    a("v_and_b32 v3, 3, v0")
    a("v_lshlrev_b32 v3, 11, v3")
    a("v_lshrrev_b32 v4, 4, v0")
    a("v_lshlrev_b32 v4, 4, v4")
    a("v_add_u32 v3, v3, v4")
    for tb in range(4):
        a(f"buffer_load_dwordx4 {vr(W_AF+4*tb)}, v3, {srd(SRD_X)}, s{s_r0x2} offen offset:{64*tb}")

def ln_compute(a):
    X = W_T0
    a("v_mov_b32 v2, 0")
    a("v_mov_b32 v3, 0")
    for r in range(32):
        a(f"v_lshlrev_b32 v4, 16, v{X+r}")
        a(f"v_and_b32 v5, 0xffff0000, v{X+r}")
        a("v_add_f32 v2, v2, v4")
        a("v_add_f32 v3, v3, v5")
    a("v_add_f32 v2, v2, v3")
    row_reduce_add(a, 2)
    a(f"v_mul_f32 v2, {f32hex(1.0/1024)}, v2")
    a("v_mov_b32 v3, 0")
    a("v_mov_b32 v6, 0")
    for r in range(32):
        a(f"v_lshlrev_b32 v4, 16, v{X+r}")
        a(f"v_and_b32 v5, 0xffff0000, v{X+r}")
        a("v_sub_f32 v4, v4, v2")
        a("v_sub_f32 v5, v5, v2")
        a("v_fmac_f32 v3, v4, v4")
        a("v_fmac_f32 v6, v5, v5")
    a("v_add_f32 v3, v3, v6")
    row_reduce_add(a, 3)
    a(f"v_mul_f32 v3, {f32hex(1.0/1024)}, v3")
    rne(a, 2, 2)
    rne(a, 3, 3)
    a(f"v_add_f32 v3, {f32hex(1e-5)}, v3")
    rne(a, 3, 3)
    a("v_sqrt_f32 v3, v3")
    a("s_nop 0")
    rne(a, 3, 3)
    a("v_and_b32 v4, 3, v0")
    a("v_lshlrev_b32 v4, 6, v4")
    a("ds_bpermute_b32 v2, v4, v2")
    a("ds_bpermute_b32 v3, v4, v3")
    a("s_waitcnt lgkmcnt(0)")
    a("v_rcp_f32 v4, v3")
    a("s_nop 0")
    for r in range(16):
        R = W_AF + r
        a(f"v_lshlrev_b32 v5, 16, v{R}")
        a(f"v_and_b32 v6, 0xffff0000, v{R}")
        a("v_sub_f32 v5, v5, v2")
        a("v_sub_f32 v6, v6, v2")
        a("v_cvt_pk_bf16_f32 v7, v5, v6")
        a("v_lshlrev_b32 v5, 16, v7")
        a("v_and_b32 v6, 0xffff0000, v7")
        a(f"v_mul_f32 v{W_M2}, v5, v4")
        a(f"v_mul_f32 v{W_M2+1}, v6, v4")
        a(f"v_fma_f32 v5, -v{W_M2}, v3, v5")
        a(f"v_fma_f32 v6, -v{W_M2+1}, v3, v6")
        a(f"v_fma_f32 v{W_M2}, v5, v4, v{W_M2}")
        a(f"v_fma_f32 v{W_M2+1}, v6, v4, v{W_M2+1}")
        a(f"v_cvt_pk_bf16_f32 v{R}, v{W_M2}, v{W_M2+1}")

def af_via_lds(a, vpk, lds_af):
    a("v_lshlrev_b32 v2, 4, v0")
    a(f"ds_write_b128 v2, {vr(vpk)} offset:{lds_af}")
    a("v_and_b32 v2, 3, v0")
    a("v_lshlrev_b32 v2, 8, v2")
    a("v_lshrrev_b32 v3, 4, v0")
    a("v_lshlrev_b32 v3, 4, v3")
    a("v_add_u32 v2, v2, v3")
    a("s_waitcnt lgkmcnt(0)")
    for tb in range(4):
        a(f"ds_read_b128 {vr(W_AF+4*tb)}, v2 offset:{lds_af + 64*tb}")
    a("s_waitcnt lgkmcnt(0)")

def final32(a):
    a("s_and_b32 s8, s2, 7")
    a("s_lshr_b32 s9, s2, 3")
    a("s_lshl_b32 s12, s8, 8")
    a(f"s_add_u32 s12, s12, {FS}")
    a("v_lshlrev_b32 v6, 2, v0")
    if FDIRECT:
        lds_wait(a, L_REC, 8)
    else:
        a("s_mov_b32 s10, -1")
        a("s_mov_b32 s11, 0x0fffffff")
        poll_flags(a, 6, 12, 7, execmask="s[10:11]")
    stamp(a, 3)
    a("v_and_b32 v3, 31, v0")
    a("v_and_b32 v4, 15, v0")
    a("v_lshlrev_b32 v4, 4, v4")
    a("v_bfe_u32 v5, v0, 4, 1")
    a("v_lshl_add_u32 v4, v5, 3, v4")
    a("s_lshl_b32 s13, s9, 11")
    a("s_lshl_b32 s14, s8, 8")
    a("s_add_u32 s13, s13, s14")
    a(f"buffer_load_dwordx2 v[140:141], v4, {srd(SRD_X)}, s13 offen")
    a("v_lshrrev_b32 v2, 5, v0")
    a("v_lshlrev_b32 v2, 16, v2")
    a("v_lshl_add_u32 v2, v3, 4, v2")
    a("s_lshl_b32 s12, s8, 17")
    a("s_lshl_b32 s14, s9, 9")
    a("s_add_u32 s12, s12, s14")
    a(f"s_add_u32 s12, s12, {SP}")
    tag_setup(a, 144)
    def emit(fl):
        for j in range(28, 32):
            for e in range(4):
                a(f"v_and_b32 v{8+4*j+e}, 0xff, v{144+e}")
        for j in range(32):
            if j == 28:
                a("s_mov_b32 exec_lo, -1"); a("s_mov_b32 exec_hi, 0")
            a(f"s_add_u32 s5, s12, {j*2048}")
            a(f"buffer_load_dwordx4 {vr(8+4*j)}, v2, {srd(SRD_WS)}, s5 offen {fl}")
        a("s_mov_b64 exec, -1")
        for q in range(32):
            a(f"s_waitcnt vmcnt({31-q})")
            tag_check(a, 8+4*q, 136, 137, 138, first=(q == 0))
    gather(a, emit, 136)
    for j in range(1, 32):
        for e in range(4):
            a(f"v_add_f32 v{8+e}, v{8+e}, v{8+4*j+e}")
    for e in range(4):
        a(f"v_mov_b32 v{12+e}, v{8+e}")
    a("s_nop 1")
    for e in range(4):
        a(f"v_permlane32_swap_b32 v{8+e}, v{12+e}")
    a("s_nop 1")
    a(f"s_mov_b32 s14, {f32hex(-1.4426950408889634)}")
    for e in range(4):
        s_, f_, t = 8+e, 12+e, 16+e
        rne(a, s_, s_)
        rne(a, f_, f_)
        a(f"v_mul_f32 v{t}, s14, v{f_}")
        a(f"v_exp_f32 v{t}, v{t}")
        a("s_nop 0")
        a(f"v_add_f32 v{t}, 1.0, v{t}")
        a(f"v_rcp_f32 v{t}, v{t}")
        a("s_nop 0")
        a(f"v_mul_f32 v{t}, v{t}, v{f_}")
        rne(a, t, t)
        a(f"v_mul_f32 v{t}, v{t}, v{s_}")
        rne(a, t, t)
        xr = 140 + e // 2
        if e % 2 == 0:
            a(f"v_lshlrev_b32 v{s_}, 16, v{xr}")
        else:
            a(f"v_and_b32 v{s_}, 0xffff0000, v{xr}")
        a(f"v_add_f32 v{t}, v{t}, v{s_}")
    a("v_cvt_pk_bf16_f32 v20, v16, v17")
    a("v_cvt_pk_bf16_f32 v21, v18, v19")
    a("s_mov_b32 exec_lo, -1"); a("s_mov_b32 exec_hi, 0")
    a(f"buffer_store_dwordx2 v[20:21], v4, {srd(SRD_OUT)}, s13 offen")
    stamp(a, 4)
    stamp_flush(a)

def final128(a):
    a("s_and_b32 s8, s2, 7")
    a("s_lshr_b32 s9, s2, 3")
    a("s_and_b32 s9, s9, 3")
    a("s_lshr_b32 s10, s2, 5")
    lds_wait(a, L_REC, 8)
    stamp(a, 3)
    a("v_and_b32 v3, 7, v0")
    a("s_lshl_b32 s11, s10, 3")
    a("v_add_u32 v3, s11, v3")
    a("v_and_b32 v4, 15, v3")
    a("v_lshlrev_b32 v4, 4, v4")
    a("v_lshrrev_b32 v5, 4, v3")
    a("v_lshl_add_u32 v4, v5, 3, v4")
    a("s_lshl_b32 s13, s9, 11")
    a("s_lshl_b32 s14, s8, 8")
    a("s_add_u32 s13, s13, s14")
    a(f"buffer_load_dwordx2 v[140:141], v4, {srd(SRD_X)}, s13 offen")
    a("v_lshrrev_b32 v2, 3, v0")
    a("v_lshlrev_b32 v2, 11, v2")
    a("v_lshl_add_u32 v2, v3, 4, v2")
    a("s_lshl_b32 s12, s8, 17")
    a("s_lshl_b32 s14, s9, 9")
    a("s_add_u32 s12, s12, s14")
    a(f"s_add_u32 s12, s12, {SP}")
    tag_setup(a, 144)
    def emit(fl):
        for e in range(4):
            a(f"v_and_b32 v{8+28+e}, 0xff, v{144+e}")
        for i in range(8):
            if i == 7:
                a("s_mov_b32 exec_lo, -1"); a("s_mov_b32 exec_hi, 0")
            a(f"s_add_u32 s5, s12, {i*8*2048}")
            a(f"buffer_load_dwordx4 {vr(8+4*i)}, v2, {srd(SRD_WS)}, s5 offen {fl}")
        a("s_mov_b64 exec, -1")
        for q in range(8):
            a(f"s_waitcnt vmcnt({7-q})")
            tag_check(a, 8+4*q, 136, 137, 138, first=(q == 0))
    gather(a, emit, 136)
    for e in range(4):
        a(f"v_add_f32 v{8+e}, v{8+e}, v{12+e}")
        a(f"v_add_f32 v{16+e}, v{16+e}, v{20+e}")
        a(f"v_add_f32 v{24+e}, v{24+e}, v{28+e}")
        a(f"v_add_f32 v{32+e}, v{32+e}, v{36+e}")
    for e in range(4):
        a(f"v_add_f32 v{8+e}, v{8+e}, v{16+e}")
        a(f"v_add_f32 v{12+e}, v{24+e}, v{32+e}")
    a("s_nop 1")
    for e in range(8):
        a(f"v_add_f32_dpp v{8+e}, v{8+e}, v{8+e} row_ror:8 row_mask:0xf bank_mask:0xf")
    for e in range(8):
        a(f"v_mov_b32 v{40+e}, v{8+e}")
    a("s_nop 1")
    for e in range(8):
        a(f"v_permlane32_swap_b32 v{8+e}, v{40+e}")
    a("s_nop 1")
    for e in range(8):
        a(f"v_add_f32 v{8+e}, v{8+e}, v{40+e}")
    for e in range(8):
        a(f"v_mov_b32 v{40+e}, v{8+e}")
    a("s_nop 1")
    for e in range(8):
        a(f"v_permlane16_swap_b32 v{8+e}, v{40+e}")
    a("s_nop 1")
    for e in range(8):
        a(f"v_add_f32 v{8+e}, v{8+e}, v{40+e}")
    a(f"s_mov_b32 s14, {f32hex(-1.4426950408889634)}")
    for e in range(4):
        s_, f_, t = 8+e, 12+e, 16+e
        rne(a, s_, s_)
        rne(a, f_, f_)
        a(f"v_mul_f32 v{t}, s14, v{f_}")
        a(f"v_exp_f32 v{t}, v{t}")
        a("s_nop 0")
        a(f"v_add_f32 v{t}, 1.0, v{t}")
        a(f"v_rcp_f32 v{t}, v{t}")
        a("s_nop 0")
        a(f"v_mul_f32 v{t}, v{t}, v{f_}")
        rne(a, t, t)
        a(f"v_mul_f32 v{t}, v{t}, v{s_}")
        rne(a, t, t)
        xr = 140 + e // 2
        if e % 2 == 0:
            a(f"v_lshlrev_b32 v{s_}, 16, v{xr}")
        else:
            a(f"v_and_b32 v{s_}, 0xffff0000, v{xr}")
        a(f"v_add_f32 v{t}, v{t}, v{s_}")
    a("v_cvt_pk_bf16_f32 v20, v16, v17")
    a("v_cvt_pk_bf16_f32 v21, v18, v19")
    a("s_mov_b64 exec, 0xff")
    a(f"buffer_store_dwordx2 v[20:21], v4, {srd(SRD_OUT)}, s13 offen")
    stamp(a, 4)
    stamp_flush(a)

def gen(path, depth=8):
    a = A()
    hdr = open("recurrent_scan__gqa_block_cached__glu_gated_geglu__decode.s.ref").read().split("\n")
    top = [l for l in hdr if l.startswith(";") and "@launch" not in l]
    out = top + [f"; @launch grid=(256,1,1) block=(768,1,1) lds={LDS_BYTES}"]
    out += ['.amdgcn_target "amdgcn-amd-amdhsa--gfx950"', ".text", f".globl {NAME}", ".p2align 8",
            f".type {NAME},@function", f"{NAME}:"]
    a("s_cmp_ge_u32 s2, 256")
    a("s_cbranch_scc1 L_end")
    a("s_load_dwordx16 s[16:31], s[0:1], 0")
    a("s_load_dwordx8 s[32:39], s[0:1], 64")
    a("v_lshrrev_b32 v1, 6, v0")
    a("v_and_b32 v0, 63, v0")
    a("s_nop 0")
    a("v_readfirstlane_b32 s3, v1")
    a("s_and_b32 s4, s2, 7")
    a("s_lshr_b32 s5, s2, 3")
    a("s_lshl_b32 s96, s4, 5")
    a("s_add_u32 s96, s96, s5")
    a("s_mul_i32 s97, s4, 28")
    a("s_add_u32 s97, s97, s5")
    a(f"s_mov_b32 s{S_SELLO}, 0x05040100")
    a(f"s_mov_b32 s{S_SELHI}, 0x07060302")
    a(f"s_mov_b32 s{S_SCALE}, {f32hex(128 ** -0.5)}")
    a(f"s_mov_b32 s{S_LOG2E}, {f32hex(1.4426950408889634)}")
    a(f"s_mov_b32 s{S_MFF}, 0xff")
    a(f"s_mov_b32 s{S_PA}, 0x0c0c0400")
    a(f"s_mov_b32 s{S_PB}, 0x04000c0c")
    a("s_waitcnt lgkmcnt(0)")
    a(f"s_load_dword s{S_TAG}, s[38:39], {EPOCH}")
    mk_srd(a, SRD_K, 18, 0x2000000)
    mk_srd(a, SRD_V, 20, 0x2000000)
    mk_srd(a, SRD_WS, 38, 0x10000000)
    mk_srd(a, SRD_X, 16, 8192)
    mk_srd(a, SRD_OUT, 34, 8192)
    if STAMPS:
        for i in range(16): a(f"s_mov_b32 s{72+i}, 0")
    stamp(a, 0)
    a("s_cmp_ge_u32 s3, 8")
    a("s_cbranch_scc1 L_notattn")

    K0, V0, Q0, S0 = 8, 72, 136, 152
    a("s_lshl_b32 s6, s96, 17")
    a("s_lshl_b32 s5, s3, 14")
    a("s_add_u32 s6, s6, s5")
    a("v_and_b32 v2, 15, v0")
    a("v_lshrrev_b32 v3, 4, v0")
    a("v_lshlrev_b32 v4, 8, v2")
    a("v_lshl_add_u32 v4, v3, 4, v4")
    a("v_lshlrev_b32 v5, 10, v3")
    a("v_lshl_add_u32 v5, v2, 4, v5")
    loads = []
    for kt in range(4):
        for c in range(4):
            loads.append((SRD_K, 4, K0+16*kt+4*c, kt*4096, c*64))
    for u in range(2):
        for i in range(8):
            loads.append((SRD_V, 5, V0+32*u+4*i, u*8192+(i >> 2)*4096, (i & 3)*256))
    for n, (sr, vo, dst, so, io) in enumerate(loads):
        if n == ABAR:
            a("s_waitcnt lgkmcnt(0)")
            a("s_barrier")
        dd = depth if n < VFROM else VDEPTH
        if n >= dd:
            a(f"s_waitcnt vmcnt({dd-1})")
        a(f"s_add_u32 s7, s6, {so}")
        a(f"buffer_load_dwordx4 {vr(dst)}, v{vo}, {srd(sr)}, s7 offen offset:{io} nt")
        if NOPOLL and n == QTRIG:
            lds_inc(a, L_KISS)
    a(f"s_add_u32 s{S_TAG}, s{S_TAG}, 1")
    stamp(a, 1)
    if STRIP:
        a("s_waitcnt vmcnt(0)")
        stamp(a, 5)
        stamp_flush(a)
        a("s_endpgm")
    lds_inc(a, L_ISS)
    lds_wait(a, L_QRDY, 1)
    stamp(a, 2)
    a("v_and_b32 v2, 7, v0")
    a("v_lshlrev_b32 v2, 8, v2")
    a("v_lshrrev_b32 v3, 4, v0")
    a("v_lshl_add_u32 v2, v3, 4, v2")
    for c in range(4):
        a(f"ds_read_b128 {vr(Q0+4*c)}, v2 offset:{L_QS + 64*c}")
    a("s_waitcnt vmcnt(16) lgkmcnt(0)")
    stamp(a, 3)
    for kt in range(4):
        for c in range(4):
            cc = "0" if c == 0 else vr(S0+4*kt)
            a(f"v_mfma_f32_16x16x32_bf16 {vr(S0+4*kt)}, {vr(K0+16*kt+4*c)}, {vr(Q0+4*c)}, {cc}")
    a("s_nop 7")
    a("s_nop 1")
    for p in range(8):
        x, y = S0+2*p, S0+2*p+1
        a(f"v_cvt_pk_bf16_f32 v2, v{x}, v{y}")
        a(f"v_lshlrev_b32 v{x}, 16, v2")
        a(f"v_and_b32 v{y}, 0xffff0000, v2")
        a(f"v_mul_f32 v{x}, s{S_SCALE}, v{x}")
        a(f"v_mul_f32 v{y}, s{S_SCALE}, v{y}")
        a(f"v_cvt_pk_bf16_f32 v2, v{x}, v{y}")
        a(f"v_lshlrev_b32 v{x}, 16, v2")
        a(f"v_and_b32 v{y}, 0xffff0000, v2")
    a(f"v_max3_f32 v6, v{S0}, v{S0+1}, v{S0+2}")
    for i in range(3, 15, 2):
        a(f"v_max3_f32 v6, v6, v{S0+i}, v{S0+i+1}")
    a(f"v_max_f32 v6, v6, v{S0+15}")
    xg_reduce(a, 6, 7, "v_max_f32")
    a(f"v_mul_f32 v6, s{S_LOG2E}, v6")
    for i in range(16):
        a(f"v_fma_f32 v{S0+i}, v{S0+i}, s{S_LOG2E}, -v6")
    for i in range(16):
        a(f"v_exp_f32 v{S0+i}, v{S0+i}")
    a("s_nop 0")
    a(f"v_add_f32 v7, v{S0}, v{S0+1}")
    for i in range(2, 16):
        a(f"v_add_f32 v7, v7, v{S0+i}")
    xg_reduce(a, 7, 2, "v_add_f32")
    P0 = 56
    for u in range(2):
        for q in range(4):
            a(f"v_cvt_pk_bf16_f32 v{P0+4*u+q}, v{S0+8*u+2*q}, v{S0+8*u+2*q+1}")
    stamp(a, 4)
    O0, TB0 = 8, 40
    for u in range(2):
        a(f"s_waitcnt vmcnt({8 if u == 0 else 0})")
        for w in range(4):
            TB = TB0 + 8*(w % 2)
            for p in range(4):
                a(f"v_perm_b32 v{TB+p}, v{V0+32*u+4*(2*p+1)+w}, v{V0+32*u+4*(2*p)+w}, s{S_SELLO}")
            for p in range(4):
                a(f"v_perm_b32 v{TB+4+p}, v{V0+32*u+4*(2*p+1)+w}, v{V0+32*u+4*(2*p)+w}, s{S_SELHI}")
            a("s_nop 1")
            for h in range(2):
                t = 2*w+h
                cc = "0" if u == 0 else vr(O0+4*t)
                a(f"v_mfma_f32_16x16x32_bf16 {vr(O0+4*t)}, {vr(P0+4*u)}, {vr(TB+4*h)}, {cc}")
    a("s_nop 7")
    a("s_nop 1")
    R0 = 72
    for r in range(4):
        for t in range(8):
            a(f"v_mov_b32 v{R0+8*r+t}, v{O0+4*t+r}")
    a("v_lshrrev_b32 v2, 4, v0")
    a("v_lshlrev_b32 v2, 11, v2")
    a("v_and_b32 v3, 15, v0")
    a("v_lshl_add_u32 v2, v3, 5, v2")
    a("s_lshl_b32 s5, s3, 12")
    a("v_add_u32 v2, s5, v2")
    a("s_mov_b32 exec_lo, -1"); a("s_mov_b32 exec_hi, 0")
    for r in range(4):
        a(f"ds_write_b128 v2, {vr(R0+8*r)} offset:{L_OP + r*512}")
        a(f"ds_write_b128 v2, {vr(R0+8*r+4)} offset:{L_OP + r*512 + 16}")
    a("s_mov_b64 exec, -1")
    a("v_and_b32 v2, 7, v0")
    a("v_lshlrev_b32 v2, 3, v2")
    a("s_lshl_b32 s5, s3, 6")
    a("v_add_u32 v2, s5, v2")
    a(f"ds_write_b64 v2, v[6:7] offset:{L_ML}")
    stamp(a, 5)
    lds_inc(a, L_OCNT)
    lds_wait(a, L_OCNT, 8)
    stamp(a, 6)
    a("s_lshl_b32 s5, s3, 3")
    a("v_mov_b32 v2, s5")
    for w in range(8):
        a(f"ds_read_b64 v[{8+2*w}:{9+2*w}], v2 offset:{L_ML + w*64}")
    a("s_lshl_b32 s5, s3, 9")
    a("v_and_b32 v3, 31, v0")
    a("v_lshlrev_b32 v3, 4, v3")
    a("v_add_u32 v3, s5, v3")
    for w in range(8):
        a(f"ds_read_b128 {vr(24+4*w)}, v3 offset:{L_OP + w*4096}")
    tag_setup(a, 64)
    a("s_waitcnt lgkmcnt(8)")
    a("v_max3_f32 v4, v8, v10, v12")
    a("v_max3_f32 v4, v4, v14, v16")
    a("v_max3_f32 v4, v4, v18, v20")
    a("v_max_f32 v4, v4, v22")
    for w in range(8):
        a(f"v_sub_f32 v{8+2*w}, v{8+2*w}, v4")
    for w in range(8):
        a(f"v_exp_f32 v{8+2*w}, v{8+2*w}")
    a("s_waitcnt lgkmcnt(0)")
    a("v_mul_f32 v5, v8, v9")
    for e in range(4):
        a(f"v_mul_f32 v{60+e}, v8, v{24+e}")
    for w in range(1, 8):
        a(f"v_fmac_f32 v5, v{8+2*w}, v{9+2*w}")
        for e in range(4):
            a(f"v_fmac_f32 v{60+e}, v{8+2*w}, v{24+4*w+e}")
    tag_apply(a, 60, 64)
    a("s_lshr_b32 s5, s96, 4")
    a("s_and_b32 s5, s5, 3")
    a("s_lshl_b32 s5, s5, 3")
    a("s_add_u32 s5, s5, s3")
    a("s_lshl_b32 s5, s5, 2")
    a("s_lshr_b32 s6, s96, 6")
    a("s_add_u32 s5, s5, s6")
    a("s_lshl_b32 s5, s5, 4")
    a("s_and_b32 s6, s96, 15")
    a("s_add_u32 s5, s5, s6")
    a("s_lshl_b32 s5, s5, 10")
    a(f"s_add_u32 s5, s5, {OREC}")
    a("v_lshlrev_b32 v3, 4, v0")
    a(f"v_mov_b32 v6, s{S_TAG}")
    a(f"v_mov_b32 v7, s{S_TAG}")
    a("s_mov_b32 exec_lo, -1"); a("s_mov_b32 exec_hi, 0")
    a(f"buffer_store_dwordx4 v[60:63], v3, {srd(SRD_WS)}, s5 offen sc1")
    a("s_mov_b64 exec, 1")
    a(f"buffer_store_dwordx4 v[4:7], v3, {srd(SRD_WS)}, s5 offen offset:512 sc1")
    if OFLAG:
        a(f"s_sub_u32 s6, s5, {OREC}")
        a("s_lshr_b32 s6, s6, 8")
        a(f"s_add_u32 s6, s6, {FO}")
        a(f"buffer_store_dword v6, v3, {srd(SRD_WS)}, s6 offen sc1")
    a("s_mov_b64 exec, -1")
    lds_inc(a, L_REC)
    if OPAR:
        stamp(a, 7)
        a("s_lshr_b32 s12, s96, 3")
        a("s_lshl_b32 s12, s12, 16")
        a(f"s_add_u32 s12, s12, {OREC}")
        a("s_lshl_b32 s13, s3, 6")
        a("s_add_u32 s13, s13, s12")
        a("v_lshlrev_b32 v6, 10, v0")
        def body(fl):
            a(f"buffer_load_dwordx4 v[8:11], v6, {srd(SRD_WS)}, s12 offen offset:512 {fl}")
            for q in range(4):
                a(f"buffer_load_dwordx4 {vr(12+4*q)}, v6, {srd(SRD_WS)}, s13 offen offset:{16*q} {fl}")
            a("s_mov_b64 exec, -1")
            a("s_waitcnt vmcnt(0)")
            a(f"v_xor_b32 v30, s{S_TAG}, v10")
            for q in range(4):
                tag_check(a, 12+4*q, 30, 31, 32)
            a("v_cmp_ne_u32 vcc, 0, v30")
            a("s_nop 3")
            a("s_cmp_eq_u64 vcc, 0")
        lp = a.uniq("og"); dn = a.uniq("ogd")
        body("")
        if not NOSYNC:
            a(f"s_cbranch_scc1 {dn}")
            a(f"s_mov_b32 s{S_TMO}, 100000")
            a.label(lp)
            a(f"s_sleep {OSLEEP}")
            a("s_mov_b64 exec, vcc")
            body("sc1")
            a(f"s_cbranch_scc1 {dn}")
            a(f"s_sub_u32 s{S_TMO}, s{S_TMO}, 1")
            a(f"s_cmp_lg_u32 s{S_TMO}, 0")
            a(f"s_cbranch_scc1 {lp}")
            a.label(dn)
        stamp(a, 8)
        a("v_mov_b32 v30, v8")
        row_reduce_max(a, 30)
        a("v_sub_f32 v8, v8, v30")
        a("v_exp_f32 v8, v8")
        a("s_nop 0")
        a("v_mul_f32 v9, v8, v9")
        row_reduce_add(a, 9)
        a("v_rcp_f32 v9, v9")
        a("s_nop 0")
        a("v_mul_f32 v8, v8, v9")
        for e in range(16):
            a(f"v_mul_f32 v{12+e}, v{12+e}, v8")
        for r in (8, 4, 2, 1):
            for e in range(16):
                a(f"v_add_f32_dpp v{12+e}, v{12+e}, v{12+e} row_ror:{r} row_mask:0xf bank_mask:0xf")
        for q in range(8):
            a(f"v_cvt_pk_bf16_f32 v{32+q}, v{12+2*q}, v{13+2*q}")
        a("v_lshrrev_b32 v2, 4, v0")
        a("v_lshlrev_b32 v2, 8, v2")
        a("s_lshl_b32 s5, s3, 5")
        a("v_add_u32 v2, s5, v2")
        a("s_mov_b32 exec_lo, 0x00010001")
        a("s_mov_b32 exec_hi, 0x00010001")
        a(f"ds_write_b128 v2, v[32:35] offset:{L_AF}")
        a(f"ds_write_b128 v2, v[36:39] offset:{L_AF+16}")
        a("s_mov_b64 exec, -1")
        lds_inc(a, L_OAF)
        stamp(a, 9)
        stamp_flush(a)
        a("s_endpgm")
    stamp(a, 7)
    stamp_flush(a)
    a("s_endpgm")

    a.label("L_notattn")
    if PRIO:
        a("s_setprio 3")
    a("s_cmp_eq_u32 s3, 11")
    a("s_cbranch_scc1 L_comm")
    a("s_cmp_eq_u32 s3, 8")
    a("s_cbranch_scc1 L_w8")
    a("s_cmp_lt_u32 s2, 224")
    a("s_cbranch_scc1 L_ffn")
    a("s_waitcnt lgkmcnt(0)")
    a("s_barrier")
    a("s_endpgm")
    a.label("L_ffn")
    a("s_cmp_eq_u32 s3, 9")
    a("s_cselect_b32 s52, s28, s30")
    a("s_cselect_b32 s53, s29, s31")
    a(f"s_mov_b32 s54, {1024*3584*2}")
    a("s_mov_b32 s55, 0x00020000")
    a("s_lshr_b32 s8, s2, 3")
    a("s_and_b32 s9, s2, 7")
    a("s_lshl_b32 s10, s9, 8")
    ln_issue(a, 10)
    wjob_voff(a, 7168)
    a(f"s_mul_i32 s11, s9, {128*7168}")
    a("s_lshl_b32 s12, s8, 8")
    a("s_add_u32 s11, s11, s12")
    a("s_sub_u32 s13, s3, 8")
    a("s_lshl_b32 s13, s13, 15")
    a(f"s_add_u32 s13, s13, {L_WT}")
    def mid_ffn():
        a(f"s_add_u32 s{S_TAG}, s{S_TAG}, 1")
        a(f"s_waitcnt vmcnt({min(WPACE,32)})")
        stamp(a, 1)
        a("v_mov_b32 v160, v1")
        ln_compute(a)
        a("v_mov_b32 v1, v160")
        stamp(a, 2)
    def gate_ffn():
        if GATE_GU:
            lds_wait(a, L_QJ, 1)
    wjob_issue(a, 7168, 11, None, pace=WPACE, barrier=True, dyn=13, mid=mid_ffn, gate=gate_ffn, bar_at=FBAR)
    a("s_waitcnt vmcnt(0)")
    if STRIP == 1:
        a("s_endpgm")
    a("v_lshlrev_b32 v2, 4, v0")
    a("v_add_u32 v3, s13, v2")
    stamp(a, 3)
    wjob_consume_dyn(a)
    a("s_sub_u32 s12, s3, 9")
    a("s_mul_i32 s14, s12, 458752")
    a("s_mul_i32 s15, s9, 57344")
    a("s_add_u32 s14, s14, s15")
    a("s_lshl_b32 s15, s8, 9")
    a("s_add_u32 s14, s14, s15")
    a(f"s_add_u32 s14, s14, {GUP}")
    a("s_lshl_b32 s15, s8, 4")
    a("s_lshl_b32 s12, s12, 3")
    a("s_add_u32 s15, s15, s12")
    a("s_add_u32 s15, s15, s9")
    a("s_lshl_b32 s15, s15, 2")
    a(f"s_add_u32 s15, s15, {FGU}")
    wjob_store(a, 14, 14336, 15, flag=not NOPOLL)
    stamp(a, 4)
    if STRIP:
        a("s_endpgm")
    a("s_cmp_eq_u32 s3, 9")
    a("s_cbranch_scc1 L_down")
    stamp_flush(a)
    a("s_endpgm")

    a.label("L_down")
    a("s_lshr_b32 s8, s97, 3")
    a("s_and_b32 s9, s97, 7")
    mk_srd(a, SRD_W, 32, 3584*1024*2)
    a("s_lshl_b32 s12, s8, 6")
    a(f"s_add_u32 s12, s12, {FGU}")
    a("v_lshlrev_b32 v6, 2, v0")
    if NOPOLL:
        lds_wait(a, L_ISS, 8)
    else:
        poll_flags(a, 6, 12, 7, execmask="0xffff")
    stamp(a, 5)
    a("v_lshrrev_b32 v2, 4, v0")
    a("v_mul_u32_u24 v2, 14336, v2")
    a("v_and_b32 v3, 15, v0")
    a("v_lshl_add_u32 v2, v3, 4, v2")
    a("s_lshl_b32 s12, s8, 9")
    a(f"s_add_u32 s12, s12, {GUP}")
    G = 8
    def emit(fl):
        for mat in range(2):
            for sp in range(8):
                a(f"s_add_u32 s5, s12, {mat*458752 + sp*57344}")
                a(f"buffer_load_dwordx4 {vr(G+64*mat+8*sp)}, v2, {srd(SRD_WS)}, s5 offen {fl}")
                a(f"buffer_load_dwordx4 {vr(G+64*mat+8*sp+4)}, v2, {srd(SRD_WS)}, s5 offen offset:256 {fl}")
        for q in range(32):
            a(f"s_waitcnt vmcnt({31-q})")
            tag_check(a, G+4*q, 136, 137, 138, first=(q == 0))
    gather(a, emit, 136)
    for mat in range(2):
        for sp in range(1, 8):
            for e in range(8):
                a(f"v_add_f32 v{G+64*mat+e}, v{G+64*mat+e}, v{G+64*mat+8*sp+e}")
    c1 = 0.044715
    c2 = -2.0 * 0.7978845608028654 * 1.4426950408889634
    a(f"s_mov_b32 s12, {f32hex(c1)}")
    a(f"s_mov_b32 s13, {f32hex(c2)}")
    for e in range(8):
        g, u, t = G+e, G+64+e, 16+e
        rne(a, g, g)
        rne(a, u, u)
        a(f"v_mul_f32 v{t}, v{g}, v{g}")
        a(f"v_mul_f32 v{t}, v{t}, v{g}")
        a(f"v_fma_f32 v{t}, v{t}, s12, v{g}")
        a(f"v_mul_f32 v{t}, s13, v{t}")
        a(f"v_exp_f32 v{t}, v{t}")
        a("s_nop 0")
        a(f"v_add_f32 v{t}, 1.0, v{t}")
        a(f"v_rcp_f32 v{t}, v{t}")
        a("s_nop 0")
        a(f"v_mul_f32 v{t}, v{t}, v{g}")
        rne(a, t, t)
        a(f"v_mul_f32 v{t}, v{t}, v{u}")
    for q in range(4):
        a(f"v_cvt_pk_bf16_f32 v{24+q}, v{16+2*q}, v{17+2*q}")
    stamp(a, 6)
    af_via_lds(a, 24, L_AF + 1024)
    wjob_voff(a, 2048)
    lds_wait(a, L_GO, 1)
    a(f"s_mul_i32 s11, s8, {128*2048}")
    a("s_lshl_b32 s12, s9, 8")
    a("s_add_u32 s11, s11, s12")
    wjob_issue(a, 2048, 11, L_WT + 0x8000, pace=TPACE)
    a("s_waitcnt vmcnt(0)")
    stamp(a, 8)
    wjob_consume(a, L_WT + 0x8000)
    a("s_lshl_b32 s14, s9, 17")
    a("s_add_u32 s15, s8, 32")
    a("s_lshl_b32 s12, s15, 11")
    a("s_add_u32 s14, s14, s12")
    a(f"s_add_u32 s14, s14, {SP}")
    a("s_lshl_b32 s12, s9, 6")
    a("s_add_u32 s15, s15, s12")
    a("s_lshl_b32 s15, s15, 2")
    a(f"s_add_u32 s15, s15, {FS}")
    wjob_store(a, 14, 512, 15, flag=not FDIRECT)
    stamp(a, 7)
    stamp_flush(a)
    a("s_endpgm")

    a.label("L_w8")
    mk_srd(a, SRD_W, 22, 1024*4096*2)
    a("s_lshr_b32 s8, s2, 3")
    a("s_and_b32 s9, s2, 7")
    a("s_lshl_b32 s10, s9, 8")
    ln_issue(a, 10)
    wjob_voff(a, 8192)
    a(f"s_mul_i32 s11, s9, {128*8192}")
    a("s_lshl_b32 s12, s8, 8")
    a("s_add_u32 s11, s11, s12")
    def mid_q():
        a(f"s_add_u32 s{S_TAG}, s{S_TAG}, 1")
        a(f"s_waitcnt vmcnt({min(QPACE,32)})")
        stamp(a, 1)
        ln_compute(a)
        stamp(a, 2)
    wjob_issue(a, 8192, 11, L_WT, pace=QPACE, barrier=True, mid=mid_q, bar_at=32)
    a("s_waitcnt vmcnt(0)")
    if GATE_GU:
        lds_inc(a, L_QJ)
    if STRIP == 1:
        a("s_endpgm")
    stamp(a, 3)
    wjob_consume(a, L_WT)
    a("s_lshl_b32 s14, s9, 16")
    a("s_lshl_b32 s15, s8, 9")
    a("s_add_u32 s14, s14, s15")
    a(f"s_add_u32 s14, s14, {QP}")
    a("s_lshl_b32 s15, s2, 2")
    a(f"s_add_u32 s15, s15, {FQ}")
    wjob_store(a, 14, 16384, 15, flag=not NOPOLL)
    if QWAIT:
        lds_inc(a, L_QJ)
    stamp(a, 4)
    if STRIP:
        a("s_endpgm")
    a("s_lshr_b32 s8, s96, 3")
    a("s_and_b32 s9, s96, 7")
    mk_srd(a, SRD_W, 24, 4096*1024*2)
    wjob_voff(a, 2048)
    a("s_lshl_b32 s12, s8, 16")
    a(f"s_add_u32 s12, s12, {OREC}")
    a("v_lshlrev_b32 v6, 10, v0")
    a("v_add_u32 v6, 512, v6")
    if OPAR:
        lds_wait(a, L_REC, GOREC)
        stamp(a, 8)
        lds_inc(a, L_GO)
        a(f"s_mul_i32 s11, s8, {128*2048}")
        a("s_lshl_b32 s13, s9, 8")
        a("s_add_u32 s11, s11, s13")
        wjob_issue(a, 2048, 11, L_WT, pace=TPACE)
        a("s_waitcnt vmcnt(0)")
        stamp(a, 5)
        lds_wait(a, L_OAF, 8)
        stamp(a, 6)
        a("v_and_b32 v2, 3, v0")
        a("v_lshlrev_b32 v2, 8, v2")
        a("v_lshrrev_b32 v3, 4, v0")
        a("v_lshlrev_b32 v3, 4, v3")
        a("v_add_u32 v2, v2, v3")
        for tb in range(4):
            a(f"ds_read_b128 {vr(W_AF+4*tb)}, v2 offset:{L_AF + 64*tb}")
        a("s_waitcnt lgkmcnt(0)")
    else:
        a("s_lshl_b32 s10, s8, 8")
        a(f"s_add_u32 s10, s10, {FO}")
        a("v_lshlrev_b32 v7, 2, v0")
        if TEARLY:
            lds_wait(a, L_ISS if TEARLY <= 8 else L_OCNT, TEARLY if TEARLY <= 8 else TEARLY - 8)
        else:
            lds_wait(a, L_REC, 8)
        if not NOSYNC and not TEARLY:
            lp = a.uniq("pa"); dn = a.uniq("pad")
            a(f"s_mov_b32 s{S_TMO}, 100000")
            a.label(lp)
            if OFLAG:
                a(f"buffer_load_dword v138, v7, {srd(SRD_WS)}, s10 offen sc1")
            else:
                a(f"buffer_load_dwordx4 {vr(136)}, v6, {srd(SRD_WS)}, s12 offen sc1")
            a("s_waitcnt vmcnt(0)")
            a(f"v_cmp_eq_u32 vcc, s{S_TAG}, v138")
            a("s_nop 3")
            a("s_bcnt1_i32_b64 s4, vcc")
            a(f"s_cmp_ge_u32 s4, {THR}")
            a(f"s_cbranch_scc1 {dn}")
            a(f"s_sleep {PSLEEP}")
            a(f"s_sub_u32 s{S_TMO}, s{S_TMO}, 1")
            a(f"s_cmp_lg_u32 s{S_TMO}, 0")
            a(f"s_cbranch_scc1 {lp}")
            a.label(dn)
        stamp(a, 8)
        lds_inc(a, L_GO)
        a(f"s_mul_i32 s11, s8, {128*2048}")
        a("s_lshl_b32 s13, s9, 8")
        a("s_add_u32 s11, s11, s13")
        wjob_issue(a, 2048, 11, L_WT, pace=TPACE)
        if TEARLY:
            lds_wait(a, L_REC, 8)
        if OFLAG:
            poll_flags(a, 7, 10, 138)
            poll_flags(a, 6, 12, 136, width=4, tagreg_idx=2)
        else:
            poll_flags(a, 6, 12, 136, width=4, tagreg_idx=2)
        stamp(a, 5)
        a("v_mov_b32 v138, v136")
        row_reduce_max(a, 138)
        a("v_sub_f32 v136, v136, v138")
        a("v_exp_f32 v136, v136")
        a("s_nop 0")
        a("v_mul_f32 v137, v136, v137")
        row_reduce_add(a, 137)
        a("v_rcp_f32 v137, v137")
        a("s_nop 0")
        a("v_mul_f32 v136, v136, v137")
        a("v_lshrrev_b32 v2, 4, v0")
        a("v_lshlrev_b32 v2, 14, v2")
        a("v_and_b32 v3, 15, v0")
        a("v_lshl_add_u32 v2, v3, 5, v2")
        for s in range(16):
            a(f"v_mov_b32_dpp v{140+s}, v136 row_newbcast:{s} row_mask:0xf bank_mask:0xf")
        def emit(fl):
            for s in range(16):
                a(f"s_add_u32 s5, s12, {s*1024}")
                a(f"buffer_load_dwordx4 {vr(8+8*s)}, v2, {srd(SRD_WS)}, s5 offen {fl}")
                a(f"buffer_load_dwordx4 {vr(8+8*s+4)}, v2, {srd(SRD_WS)}, s5 offen offset:16 {fl}")
            for q in range(32):
                a(f"s_waitcnt vmcnt({31-q})")
                tag_check(a, 8+4*q, 136, 137, 138, first=(q == 0))
        gather(a, emit, 136)
        for e in range(8):
            a(f"v_mul_f32 v{8+e}, v{8+e}, v140")
        for s in range(1, 16):
            for e in range(8):
                a(f"v_fmac_f32 v{8+e}, v{8+8*s+e}, v{140+s}")
        for q in range(4):
            a(f"v_cvt_pk_bf16_f32 v{24+q}, v{8+2*q}, v{9+2*q}")
        stamp(a, 6)
        af_via_lds(a, 24, L_AF)
    wjob_consume(a, L_WT)
    a("s_lshl_b32 s14, s9, 17")
    a("s_lshl_b32 s12, s8, 11")
    a("s_add_u32 s14, s14, s12")
    a(f"s_add_u32 s14, s14, {SP}")
    a("s_lshl_b32 s12, s9, 6")
    a("s_add_u32 s15, s8, s12")
    a("s_lshl_b32 s15, s15, 2")
    a(f"s_add_u32 s15, s15, {FS}")
    wjob_store(a, 14, 512, 15, flag=not FDIRECT)
    stamp(a, 7)
    stamp_flush(a)
    a("s_endpgm")

    a.label("L_comm")
    if DBGT:
        a("s_memrealtime s[98:99]")
    a("v_mov_b32 v2, 0")
    a("v_lshlrev_b32 v3, 2, v0")
    a("ds_write_b32 v3, v2")
    a("s_waitcnt lgkmcnt(0)")
    a("s_barrier")
    a(f"s_add_u32 s{S_TAG}, s{S_TAG}, 1")
    if STRIP in (1, 2):
        a("s_endpgm")
    a("s_lshr_b32 s8, s96, 4")
    a("s_and_b32 s8, s8, 3")
    a("s_lshr_b32 s9, s96, 6")
    a("s_lshl_b32 s12, s8, 8")
    a(f"s_add_u32 s12, s12, {FQ}")
    if NOPOLL:
        lds_wait(a, L_KISS, QTHR)
    else:
        if QWAIT:
            lds_wait(a, L_QJ, 1)
        a("v_lshlrev_b32 v6, 2, v0")
        poll_flags(a, 6, 12, 7)
    stamp(a, 1)
    if NOGATH:
        a("s_endpgm")
    a("s_lshl_b32 s12, s9, 14")
    a("s_lshl_b32 s13, s8, 12")
    a("s_add_u32 s12, s12, s13")
    a(f"s_add_u32 s12, s12, {QP}")
    a("v_lshlrev_b32 v2, 4, v0")
    def emit(fl):
        for sp in range(8):
            a(f"s_add_u32 s5, s12, {sp*65536}")
            for q in range(4):
                a(f"buffer_load_dwordx4 {vr(8+16*sp+4*q)}, v2, {srd(SRD_WS)}, s5 offen offset:{1024*q} {fl}")
        for q in range(32):
            a(f"s_waitcnt vmcnt({31-q})")
            tag_check(a, 8+4*q, 136, 137, 138, first=(q == 0))
    gather(a, emit, 136)
    for sp in range(1, 8):
        for e in range(16):
            a(f"v_add_f32 v{8+e}, v{8+e}, v{8+16*sp+e}")
    for q in range(8):
        a(f"v_cvt_pk_bf16_f32 v{24+q}, v{8+2*q}, v{9+2*q}")
    a("v_lshrrev_b32 v2, 5, v0")
    a("v_lshlrev_b32 v2, 8, v2")
    a("v_and_b32 v3, 15, v0")
    a("v_lshl_add_u32 v2, v3, 4, v2")
    a("v_bfe_u32 v3, v0, 4, 1")
    a("v_lshl_add_u32 v2, v3, 3, v2")
    for q in range(4):
        a(f"ds_write_b64 v2, v[{24+2*q}:{25+2*q}] offset:{L_QS + 512*q}")
    lds_inc(a, L_QRDY)
    stamp(a, 2)
    if STRIP:
        a("s_endpgm")
    a(f"s_cmp_lt_u32 s2, {128 if F128 else 32}")
    a("s_cbranch_scc1 L_final")
    stamp_flush(a)
    a("s_endpgm")
    a.label("L_final")
    if F128:
        final128(a)
    else:
        final32(a)
    a("s_mov_b64 exec, -1")
    a("s_cmp_lg_u32 s2, 0")
    a("s_cbranch_scc1 L_end")
    a("s_mov_b64 exec, 1")
    a("v_mov_b32 v2, 0")
    a(f"v_mov_b32 v3, s{S_TAG}")
    a(f"buffer_store_dword v3, v2, {srd(SRD_WS)}, 0 offen sc1")
    if DBGT:
        a("s_memrealtime s[94:95]")
        a("s_waitcnt lgkmcnt(0)")
        a("s_sub_u32 s94, s94, s98")
        mk_srd(a, 84, 36, 256)
        a("v_mov_b32 v3, s94")
        a("buffer_store_dword v3, v2, s[84:87], 0 offen")
    a.label("L_end")
    a("s_endpgm")

    out += a.l
    out += ['.section .rodata,"a"', ".p2align 6", f".amdhsa_kernel {NAME}",
            "  .amdhsa_next_free_vgpr 168", "  .amdhsa_next_free_sgpr 100", "  .amdhsa_accum_offset 168",
            "  .amdhsa_group_segment_fixed_size 0", "  .amdhsa_kernarg_size 96", "  .amdhsa_user_sgpr_count 2",
            "  .amdhsa_user_sgpr_kernarg_segment_ptr 1", "  .amdhsa_system_sgpr_workgroup_id_x 1",
            ".end_amdhsa_kernel"]
    open(path, "w").write("\n".join(out) + "\n")

def wjob_consume_dyn(a):
    def rd(tb, T):
        for i in range(8):
            a(f"ds_read_b128 {vr(T+4*i)}, v3 offset:{(tb*8+i)*1024}")
    rd(0, W_T0)
    for tb in range(4):
        T = W_T0 if tb % 2 == 0 else W_T1
        if tb < 3:
            rd(tb+1, W_T1 if tb % 2 == 0 else W_T0)
            a("s_waitcnt lgkmcnt(8)")
        else:
            a("s_waitcnt lgkmcnt(0)")
        for w in range(4):
            TB = W_TB + 8*(w % 2)
            for p in range(4):
                a(f"v_perm_b32 v{TB+p}, v{T+4*(2*p+1)+w}, v{T+4*(2*p)+w}, s{S_SELLO}")
            for p in range(4):
                a(f"v_perm_b32 v{TB+4+p}, v{T+4*(2*p+1)+w}, v{T+4*(2*p)+w}, s{S_SELHI}")
            a("s_nop 1")
            for h in range(2):
                t = 2*w + h
                c = "0" if tb == 0 else vr(W_ACC+4*t)
                a(f"v_mfma_f32_16x16x32_bf16 {vr(W_ACC+4*t)}, {vr(W_AF+4*tb)}, {vr(TB+4*h)}, {c}")

if __name__ == "__main__":
    depth = int(sys.argv[2]) if len(sys.argv) > 2 else 8
    STAMPS = "stamps" in sys.argv
    for x in sys.argv[3:]:
        if "=" in x:
            k, v = x.split("=")
            globals()[k] = int(v) if v.lstrip('-').isdigit() else v.replace('_', ' ').strip()
    gen(sys.argv[1], depth)
```

```python
import struct, sys

NAME = "recurrent_scan__gqa_block_cached__glu_gated_geglu__decode_kernel"

def f32hex(x):
    return "0x%08x" % struct.unpack("<I", struct.pack("<f", x))[0]

EPOCH = 0
FQ = 0x1000
FGU = 0x2000
FO = 0x8000
FS = 0x3000
QP = 0x100000
GUP = 0x200000
OREC = 0x400000
SP = 0x800000

L_QRDY = 0
L_OCNT = 4
L_ISS = 8
L_QJ = 12
L_DNL = 40
L_OAF = 36
L_KISS = 24
L_GO = 16
L_REC = 20
L_ML = 0x100
L_QS = 0x400
L_AF = 0xC00
L_OP = 0x2000
L_WT = 0xA000
LDS_BYTES = 0xA000 + 3 * 0x8000

S_TAG = 40
S_TMO = 41
SRD_K, SRD_V, SRD_W, SRD_WS, SRD_X, SRD_OUT = 44, 48, 52, 56, 60, 64
S_SELLO, S_SELHI, S_SCALE, S_LOG2E = 68, 69, 70, 71

class A:
    def __init__(self):
        self.l = []
        self.n = 0
    def __call__(self, s):
        self.l.append("    " + s)
    def label(self, s):
        self.l.append(s + ":")
    def uniq(self, p):
        self.n += 1
        return f"L_{p}_{self.n}"

def vr(b, n=4):
    return f"v[{b}:{b+n-1}]"

def srd(b):
    return f"s[{b}:{b+3}]"

def mk_srd(a, d, ptr, nbytes):
    a(f"s_mov_b32 s{d}, s{ptr}")
    a(f"s_mov_b32 s{d+1}, s{ptr+1}")
    a(f"s_mov_b32 s{d+2}, {nbytes}")
    a(f"s_mov_b32 s{d+3}, 0x00020000")

def lds_wait(a, addr, n, vtmp=2, vz=3):
    lp = a.uniq("lw"); dn = a.uniq("lwd")
    a(f"s_mov_b32 s{S_TMO}, 400000")
    a(f"v_mov_b32 v{vz}, 0")
    a.label(lp)
    a(f"ds_read_b32 v{vtmp}, v{vz} offset:{addr}")
    a("s_waitcnt lgkmcnt(0)")
    a(f"v_readfirstlane_b32 s4, v{vtmp}")
    a("s_nop 3")
    a(f"s_cmp_ge_u32 s4, {n}")
    a(f"s_cbranch_scc1 {dn}")
    a("s_sleep 1")
    a(f"s_sub_u32 s{S_TMO}, s{S_TMO}, 1")
    a(f"s_cmp_lg_u32 s{S_TMO}, 0")
    a(f"s_cbranch_scc1 {lp}")
    a.label(dn)

def lds_inc(a, addr, v1=2, v2=3):
    a("s_mov_b64 exec, 1")
    a(f"v_mov_b32 v{v1}, 0")
    a(f"v_mov_b32 v{v2}, 1")
    a(f"ds_add_u32 v{v1}, v{v2} offset:{addr}")
    a("s_mov_b64 exec, -1")

def poll_flags(a, voff, soff_reg, vdst, width=1, tagreg_idx=0, execmask=None):
    lp = a.uniq("pl"); dn = a.uniq("pld")
    if NOSYNC:
        a("s_waitcnt vmcnt(0)")
        return
    a(f"s_mov_b32 s{S_TMO}, 100000")
    if execmask is not None:
        a(f"s_mov_b64 exec, {execmask}")
    a.label(lp)
    if width == 1:
        a(f"buffer_load_dword v{vdst}, v{voff}, {srd(SRD_WS)}, s{soff_reg} offen sc1")
    else:
        a(f"buffer_load_dwordx4 {vr(vdst)}, v{voff}, {srd(SRD_WS)}, s{soff_reg} offen sc1")
    a("s_waitcnt vmcnt(0)")
    a(f"v_cmp_ne_u32 vcc, s{S_TAG}, v{vdst+tagreg_idx}")
    a("s_nop 3")
    a("s_cmp_eq_u64 vcc, 0")
    a(f"s_cbranch_scc1 {dn}")
    a(f"s_sleep {PSLEEP}")
    a(f"s_sub_u32 s{S_TMO}, s{S_TMO}, 1")
    a(f"s_cmp_lg_u32 s{S_TMO}, 0")
    a(f"s_cbranch_scc1 {lp}")
    a.label(dn)
    if execmask is not None:
        a("s_mov_b64 exec, -1")

STAMPS = False
WPACE = 64
T12 = 0
MASKG = 0
THR2 = 48
DN10 = 0
HTRIG = 0
TEARLY = 0
DBGT = 0
OFLAG = 0
OPAR = 0
OSLEEP = 2
GOREC = 8
F128 = 0
FDIRECT = 0
QTHR = 8
NOPOLL = 0
QTRIG = 16
RSLEEP = 8
STF = 'sc1'
NOFLAG = 0
NOGATH = 0
THR = 32
QWAIT = 0
VDEPTH = 4
VFROM = 16
STRIP = 0
TLATE = 0
L2G = 1
FBAR = 2
PRIO = 0
ABAR = 2
GATE_GU = 0
NOSYNC = 0
PSLEEP = 2
QPACE = 64
TPACE = 64
STAMP_BASE = 0xF00000
def stamp(a, idx):
    if not STAMPS: return
    a("s_memrealtime s[90:91]")
    a("s_waitcnt lgkmcnt(0)")
    a(f"s_mov_b32 s{72+idx}, s90")

def stamp_flush(a):
    if not STAMPS: return
    a("s_mov_b64 exec, 1")
    a("s_lshl_b32 s92, s2, 10")
    a("s_lshl_b32 s93, s3, 6")
    a("s_add_u32 s92, s92, s93")
    a(f"s_add_u32 s92, s92, {STAMP_BASE}")
    a("v_mov_b32 v1, 0")
    for q in range(4):
        for e in range(4):
            a(f"v_mov_b32 v{8+4*q+e}, s{72+4*q+e}")
        a(f"buffer_store_dwordx4 v[{8+4*q}:{11+4*q}], v1, {srd(SRD_WS)}, s92 offen offset:{16*q}")

S_MFF, S_PA, S_PB = 42, 43, 88
def tag_setup(a, vt):
    for i in range(4):
        a(f"v_mov_b32 v{vt+i}, s{S_TAG}")
        if i:
            a(f"v_lshrrev_b32 v{vt+i}, {8*i}, v{vt+i}")

S_MFFF = 89
def tag12_setup(a, vt):
    a(f"s_mul_i32 s4, s{S_TAG}, 0x9e3779b1")
    a("s_lshr_b32 s4, s4, 16")
    a(f"v_mov_b32 v{vt}, s{S_TAG}")
    a(f"v_lshrrev_b32 v{vt+1}, 12, v{vt}")
    a(f"s_lshr_b32 s5, s{S_TAG}, 24")
    a("s_lshl_b32 s6, s4, 8")
    a("s_or_b32 s5, s5, s6")
    a(f"v_mov_b32 v{vt+2}, s5")
    a("s_lshr_b32 s4, s4, 4")
    a(f"v_mov_b32 v{vt+3}, s4")

def tag12_check(a, R, vt, acc, t1, first=False):
    for i in range(4):
        a(f"v_xor_b32 v{t1}, v{R+i}, v{vt+i}")
        if first and i == 0:
            a(f"v_and_b32 v{acc}, s{S_MFFF}, v{t1}")
        else:
            a(f"v_and_or_b32 v{acc}, v{t1}, s{S_MFFF}, v{acc}")

def tag_apply(a, R, vt):
    for i in range(4):
        a(f"v_bfi_b32 v{R+i}, s{S_MFF}, v{vt+i}, v{R+i}")

def tag_check(a, R, acc, t1, t2, first=False):
    a(f"v_perm_b32 v{t1}, v{R+1}, v{R}, s{S_PA}")
    a(f"v_perm_b32 v{t2}, v{R+3}, v{R+2}, s{S_PB}")
    a(f"v_or_b32 v{t1}, v{t1}, v{t2}")
    if first:
        a(f"v_xor_b32 v{acc}, s{S_TAG}, v{t1}")
    else:
        a(f"v_xor_b32 v{t1}, s{S_TAG}, v{t1}")
        a(f"v_or_b32 v{acc}, v{acc}, v{t1}")

def gather(a, emit, acc):
    lp = a.uniq("gr"); dn = a.uniq("grd")
    emit("" if L2G else "sc1")
    if NOSYNC: return
    a(f"v_cmp_ne_u32 vcc, 0, v{acc}")
    a("s_nop 3")
    a("s_cmp_eq_u64 vcc, 0")
    a(f"s_cbranch_scc1 {dn}")
    a(f"s_mov_b32 s{S_TMO}, 100000")
    a.label(lp)
    emit("sc1")
    a(f"v_cmp_ne_u32 vcc, 0, v{acc}")
    a("s_nop 3")
    a("s_cmp_eq_u64 vcc, 0")
    a(f"s_cbranch_scc1 {dn}")
    a(f"s_sleep {RSLEEP}")
    a(f"s_sub_u32 s{S_TMO}, s{S_TMO}, 1")
    a(f"s_cmp_lg_u32 s{S_TMO}, 0")
    a(f"s_cbranch_scc1 {lp}")
    a.label(dn)

def gather_retry_begin(a):
    lp = a.uniq("gr")
    a(f"s_mov_b32 s{S_TMO}, 100000")
    a.label(lp)
    return lp

def gather_retry_end(a, lp, acc):
    dn = a.uniq("grd")
    if NOSYNC: return
    a(f"v_cmp_ne_u32 vcc, 0, v{acc}")
    a("s_nop 3")
    a("s_cmp_eq_u64 vcc, 0")
    a(f"s_cbranch_scc1 {dn}")
    a("s_sleep 1")
    a(f"s_sub_u32 s{S_TMO}, s{S_TMO}, 1")
    a(f"s_cmp_lg_u32 s{S_TMO}, 0")
    a(f"s_cbranch_scc1 {lp}")
    a.label(dn)

def rne(a, dst, src):
    a(f"v_cvt_pk_bf16_f32 v{dst}, v{src}, v{src}")
    a(f"v_lshlrev_b32 v{dst}, 16, v{dst}")

def row_reduce_add(a, v):
    for r in (8, 4, 2, 1):
        a("s_nop 1")
        a(f"v_add_f32_dpp v{v}, v{v}, v{v} row_ror:{r} row_mask:0xf bank_mask:0xf")

def row_reduce_max(a, v):
    for r in (8, 4, 2, 1):
        a("s_nop 1")
        a(f"v_max_f32_dpp v{v}, v{v}, v{v} row_ror:{r} row_mask:0xf bank_mask:0xf")

def xg_reduce(a, v, t, op):
    a(f"v_mov_b32 v{t}, v{v}")
    a("s_nop 1")
    a(f"v_permlane32_swap_b32 v{v}, v{t}")
    a("s_nop 1")
    a(f"{op} v{v}, v{v}, v{t}")
    a(f"v_mov_b32 v{t}, v{v}")
    a("s_nop 1")
    a(f"v_permlane16_swap_b32 v{v}, v{t}")
    a("s_nop 1")
    a(f"{op} v{v}, v{v}, v{t}")

W_T0, W_T1, W_ACC, W_TB, W_AF, W_M2 = 8, 40, 72, 104, 120, 136

def wjob_issue(a, rs, s_base, lds_slot, pace=64, barrier=False, dyn=None, mid=None, gate=None, bar_at=2):
    n = 0
    done = False
    for tb in range(4):
        for i in range(8):
            if barrier and n == bar_at:
                a("s_waitcnt lgkmcnt(0)")
                a("s_barrier")
                if gate: gate()
            if n == pace:
                if mid: mid()
                done = True
            if n >= pace:
                a(f"s_waitcnt vmcnt({pace-1})")
            a(f"s_add_u32 s5, s{s_base}, {(32*tb+i)*rs}")
            if dyn is None:
                a(f"s_mov_b32 m0, {lds_slot + (tb*8+i)*1024}")
            else:
                a(f"s_add_u32 s14, s{dyn}, {(tb*8+i)*1024}")
                a("s_mov_b32 m0, s14")
            a("s_nop 0")
            a(f"buffer_load_dwordx4 v1, {srd(SRD_W)}, s5 offen nt lds")
            n += 1
    if barrier and bar_at >= 32:
        a("s_waitcnt lgkmcnt(0)")
        a("s_barrier")
    if not done:
        if mid: mid()

def wjob_voff(a, rs):
    a("v_lshrrev_b32 v2, 4, v0")
    a(f"s_mov_b32 s5, {8*rs}")
    a("v_mul_lo_u32 v2, v2, s5")
    a("v_and_b32 v1, 15, v0")
    a("v_lshlrev_b32 v1, 4, v1")
    a("v_add_u32 v1, v1, v2")

def wjob_consume(a, lds_slot):
    a("v_lshlrev_b32 v2, 4, v0")
    def rd(tb, T):
        for i in range(8):
            off = lds_slot + (tb*8+i)*1024
            a(f"ds_read_b128 {vr(T+4*i)}, v3 offset:{(tb*8+i)*1024}")
    a(f"v_add_u32 v3, {lds_slot}, v2")
    rd(0, W_T0)
    for tb in range(4):
        T = W_T0 if tb % 2 == 0 else W_T1
        if tb < 3:
            rd(tb+1, W_T1 if tb % 2 == 0 else W_T0)
            a("s_waitcnt lgkmcnt(8)")
        else:
            a("s_waitcnt lgkmcnt(0)")
        for w in range(4):
            TB = W_TB + 8*(w % 2)
            for p in range(4):
                a(f"v_perm_b32 v{TB+p}, v{T+4*(2*p+1)+w}, v{T+4*(2*p)+w}, s{S_SELLO}")
            for p in range(4):
                a(f"v_perm_b32 v{TB+4+p}, v{T+4*(2*p+1)+w}, v{T+4*(2*p)+w}, s{S_SELHI}")
            a("s_nop 1")
            for h in range(2):
                t = 2*w + h
                c = "0" if tb == 0 else vr(W_ACC+4*t)
                a(f"v_mfma_f32_16x16x32_bf16 {vr(W_ACC+4*t)}, {vr(W_AF+4*tb)}, {vr(TB+4*h)}, {c}")

def wjob_store(a, s_out, mstride, s_flag, flag=True, t12=False):
    if t12:
        tag12_setup(a, W_M2)
    else:
        tag_setup(a, W_M2)
    a("s_nop 7")
    R = W_T0
    for m in range(4):
        for t in range(8):
            a(f"v_bfi_b32 v{R+8*m+t}, s{S_MFFF if t12 else S_MFF}, v{W_M2+(t&3)}, v{W_ACC+4*t+m}")
    a("v_lshlrev_b32 v2, 4, v0")
    a("s_mov_b64 exec, 0xffff")
    for m in range(4):
        a(f"s_add_u32 s5, s{s_out}, {m*mstride}")
        a(f"buffer_store_dwordx4 {vr(R+8*m)}, v2, {srd(SRD_WS)}, s5 offen {STF}")
        a(f"buffer_store_dwordx4 {vr(R+8*m+4)}, v2, {srd(SRD_WS)}, s5 offen offset:256 {STF}")
    a("s_mov_b64 exec, 1")
    a("v_mov_b32 v2, 0")
    if flag and not NOFLAG:
        a(f"buffer_store_dword v{W_M2}, v2, {srd(SRD_WS)}, s{s_flag} offen {STF}")
    a("s_mov_b64 exec, -1")

def ln_issue(a, s_r0x2):
    a("v_lshrrev_b32 v2, 4, v0")
    a("v_lshlrev_b32 v2, 11, v2")
    a("v_and_b32 v3, 15, v0")
    a("v_lshlrev_b32 v3, 7, v3")
    a("v_add_u32 v2, v2, v3")
    for k in range(8):
        a(f"buffer_load_dwordx4 {vr(W_T0+4*k)}, v2, {srd(SRD_X)}, 0 offen offset:{16*k}")
    a("v_and_b32 v3, 3, v0")
    a("v_lshlrev_b32 v3, 11, v3")
    a("v_lshrrev_b32 v4, 4, v0")
    a("v_lshlrev_b32 v4, 4, v4")
    a("v_add_u32 v3, v3, v4")
    for tb in range(4):
        a(f"buffer_load_dwordx4 {vr(W_AF+4*tb)}, v3, {srd(SRD_X)}, s{s_r0x2} offen offset:{64*tb}")

def ln_compute(a):
    X = W_T0
    a("v_mov_b32 v2, 0")
    a("v_mov_b32 v3, 0")
    for r in range(32):
        a(f"v_lshlrev_b32 v4, 16, v{X+r}")
        a(f"v_and_b32 v5, 0xffff0000, v{X+r}")
        a("v_add_f32 v2, v2, v4")
        a("v_add_f32 v3, v3, v5")
    a("v_add_f32 v2, v2, v3")
    row_reduce_add(a, 2)
    a(f"v_mul_f32 v2, {f32hex(1.0/1024)}, v2")
    a("v_mov_b32 v3, 0")
    a("v_mov_b32 v6, 0")
    for r in range(32):
        a(f"v_lshlrev_b32 v4, 16, v{X+r}")
        a(f"v_and_b32 v5, 0xffff0000, v{X+r}")
        a("v_sub_f32 v4, v4, v2")
        a("v_sub_f32 v5, v5, v2")
        a("v_fmac_f32 v3, v4, v4")
        a("v_fmac_f32 v6, v5, v5")
    a("v_add_f32 v3, v3, v6")
    row_reduce_add(a, 3)
    a(f"v_mul_f32 v3, {f32hex(1.0/1024)}, v3")
    rne(a, 2, 2)
    rne(a, 3, 3)
    a(f"v_add_f32 v3, {f32hex(1e-5)}, v3")
    rne(a, 3, 3)
    a("v_sqrt_f32 v3, v3")
    a("s_nop 0")
    rne(a, 3, 3)
    a("v_and_b32 v4, 3, v0")
    a("v_lshlrev_b32 v4, 6, v4")
    a("ds_bpermute_b32 v2, v4, v2")
    a("ds_bpermute_b32 v3, v4, v3")
    a("s_waitcnt lgkmcnt(0)")
    a("v_rcp_f32 v4, v3")
    a("s_nop 0")
    for r in range(16):
        R = W_AF + r
        a(f"v_lshlrev_b32 v5, 16, v{R}")
        a(f"v_and_b32 v6, 0xffff0000, v{R}")
        a("v_sub_f32 v5, v5, v2")
        a("v_sub_f32 v6, v6, v2")
        a("v_cvt_pk_bf16_f32 v7, v5, v6")
        a("v_lshlrev_b32 v5, 16, v7")
        a("v_and_b32 v6, 0xffff0000, v7")
        a(f"v_mul_f32 v{W_M2}, v5, v4")
        a(f"v_mul_f32 v{W_M2+1}, v6, v4")
        a(f"v_fma_f32 v5, -v{W_M2}, v3, v5")
        a(f"v_fma_f32 v6, -v{W_M2+1}, v3, v6")
        a(f"v_fma_f32 v{W_M2}, v5, v4, v{W_M2}")
        a(f"v_fma_f32 v{W_M2+1}, v6, v4, v{W_M2+1}")
        a(f"v_cvt_pk_bf16_f32 v{R}, v{W_M2}, v{W_M2+1}")

def af_via_lds(a, vpk, lds_af):
    a("v_lshlrev_b32 v2, 4, v0")
    a(f"ds_write_b128 v2, {vr(vpk)} offset:{lds_af}")
    a("v_and_b32 v2, 3, v0")
    a("v_lshlrev_b32 v2, 8, v2")
    a("v_lshrrev_b32 v3, 4, v0")
    a("v_lshlrev_b32 v3, 4, v3")
    a("v_add_u32 v2, v2, v3")
    a("s_waitcnt lgkmcnt(0)")
    for tb in range(4):
        a(f"ds_read_b128 {vr(W_AF+4*tb)}, v2 offset:{lds_af + 64*tb}")
    a("s_waitcnt lgkmcnt(0)")

def final32(a):
    a("s_and_b32 s8, s2, 7")
    a("s_lshr_b32 s9, s2, 3")
    a("s_lshl_b32 s12, s8, 8")
    a(f"s_add_u32 s12, s12, {FS}")
    a("v_lshlrev_b32 v6, 2, v0")
    if FDIRECT:
        lds_wait(a, L_REC, 8)
    else:
        a("s_mov_b32 s10, -1")
        a("s_mov_b32 s11, 0x0fffffff")
        poll_flags(a, 6, 12, 7, execmask="s[10:11]")
    stamp(a, 3)
    a("v_and_b32 v3, 31, v0")
    a("v_and_b32 v4, 15, v0")
    a("v_lshlrev_b32 v4, 4, v4")
    a("v_bfe_u32 v5, v0, 4, 1")
    a("v_lshl_add_u32 v4, v5, 3, v4")
    a("s_lshl_b32 s13, s9, 11")
    a("s_lshl_b32 s14, s8, 8")
    a("s_add_u32 s13, s13, s14")
    a(f"buffer_load_dwordx2 v[140:141], v4, {srd(SRD_X)}, s13 offen")
    a("v_lshrrev_b32 v2, 5, v0")
    a("v_lshlrev_b32 v2, 16, v2")
    a("v_lshl_add_u32 v2, v3, 4, v2")
    a("s_lshl_b32 s12, s8, 17")
    a("s_lshl_b32 s14, s9, 9")
    a("s_add_u32 s12, s12, s14")
    a(f"s_add_u32 s12, s12, {SP}")
    tag_setup(a, 144)
    def emit(fl):
        for j in range(28, 32):
            for e in range(4):
                a(f"v_and_b32 v{8+4*j+e}, 0xff, v{144+e}")
        for j in range(32):
            if j == 28:
                a("s_mov_b32 exec_lo, -1"); a("s_mov_b32 exec_hi, 0")
            a(f"s_add_u32 s5, s12, {j*2048}")
            a(f"buffer_load_dwordx4 {vr(8+4*j)}, v2, {srd(SRD_WS)}, s5 offen {fl}")
        a("s_mov_b64 exec, -1")
        for q in range(32):
            a(f"s_waitcnt vmcnt({31-q})")
            tag_check(a, 8+4*q, 136, 137, 138, first=(q == 0))
    gather(a, emit, 136)
    for j in range(1, 32):
        for e in range(4):
            a(f"v_add_f32 v{8+e}, v{8+e}, v{8+4*j+e}")
    for e in range(4):
        a(f"v_mov_b32 v{12+e}, v{8+e}")
    a("s_nop 1")
    for e in range(4):
        a(f"v_permlane32_swap_b32 v{8+e}, v{12+e}")
    a("s_nop 1")
    a(f"s_mov_b32 s14, {f32hex(-1.4426950408889634)}")
    for e in range(4):
        s_, f_, t = 8+e, 12+e, 16+e
        rne(a, s_, s_)
        rne(a, f_, f_)
        a(f"v_mul_f32 v{t}, s14, v{f_}")
        a(f"v_exp_f32 v{t}, v{t}")
        a("s_nop 0")
        a(f"v_add_f32 v{t}, 1.0, v{t}")
        a(f"v_rcp_f32 v{t}, v{t}")
        a("s_nop 0")
        a(f"v_mul_f32 v{t}, v{t}, v{f_}")
        rne(a, t, t)
        a(f"v_mul_f32 v{t}, v{t}, v{s_}")
        rne(a, t, t)
        xr = 140 + e // 2
        if e % 2 == 0:
            a(f"v_lshlrev_b32 v{s_}, 16, v{xr}")
        else:
            a(f"v_and_b32 v{s_}, 0xffff0000, v{xr}")
        a(f"v_add_f32 v{t}, v{t}, v{s_}")
    a("v_cvt_pk_bf16_f32 v20, v16, v17")
    a("v_cvt_pk_bf16_f32 v21, v18, v19")
    a("s_mov_b32 exec_lo, -1"); a("s_mov_b32 exec_hi, 0")
    a(f"buffer_store_dwordx2 v[20:21], v4, {srd(SRD_OUT)}, s13 offen")
    stamp(a, 4)
    stamp_flush(a)

def final128(a):
    a("s_and_b32 s8, s2, 7")
    a("s_lshr_b32 s9, s2, 3")
    a("s_and_b32 s9, s9, 3")
    a("s_lshr_b32 s10, s2, 5")
    lds_wait(a, L_REC, 8)
    stamp(a, 3)
    a("v_and_b32 v3, 7, v0")
    a("s_lshl_b32 s11, s10, 3")
    a("v_add_u32 v3, s11, v3")
    a("v_and_b32 v4, 15, v3")
    a("v_lshlrev_b32 v4, 4, v4")
    a("v_lshrrev_b32 v5, 4, v3")
    a("v_lshl_add_u32 v4, v5, 3, v4")
    a("s_lshl_b32 s13, s9, 11")
    a("s_lshl_b32 s14, s8, 8")
    a("s_add_u32 s13, s13, s14")
    a(f"buffer_load_dwordx2 v[140:141], v4, {srd(SRD_X)}, s13 offen")
    a("v_lshrrev_b32 v2, 3, v0")
    a("v_lshlrev_b32 v2, 11, v2")
    a("v_lshl_add_u32 v2, v3, 4, v2")
    a("s_lshl_b32 s12, s8, 17")
    a("s_lshl_b32 s14, s9, 9")
    a("s_add_u32 s12, s12, s14")
    a(f"s_add_u32 s12, s12, {SP}")
    if T12:
        tag12_setup(a, 144)
    else:
        tag_setup(a, 144)
    def emit(fl):
        for e in range(4):
            a(f"v_and_b32 v{8+28+e}, {'0xfff' if T12 else '0xff'}, v{144+e}")
        for i in range(8):
            if i == 7:
                a("s_mov_b32 exec_lo, -1"); a("s_mov_b32 exec_hi, 0")
            a(f"s_add_u32 s5, s12, {i*8*2048}")
            a(f"buffer_load_dwordx4 {vr(8+4*i)}, v2, {srd(SRD_WS)}, s5 offen {fl}")
        a("s_mov_b64 exec, -1")
        for q in range(8):
            a(f"s_waitcnt vmcnt({7-q})")
            if T12:
                tag12_check(a, 8+4*q, 144, 136, 137, first=(q == 0))
            else:
                tag_check(a, 8+4*q, 136, 137, 138, first=(q == 0))
    gather(a, emit, 136)
    for e in range(4):
        a(f"v_add_f32 v{8+e}, v{8+e}, v{12+e}")
        a(f"v_add_f32 v{16+e}, v{16+e}, v{20+e}")
        a(f"v_add_f32 v{24+e}, v{24+e}, v{28+e}")
        a(f"v_add_f32 v{32+e}, v{32+e}, v{36+e}")
    for e in range(4):
        a(f"v_add_f32 v{8+e}, v{8+e}, v{16+e}")
        a(f"v_add_f32 v{12+e}, v{24+e}, v{32+e}")
    a("s_nop 1")
    for e in range(8):
        a(f"v_add_f32_dpp v{8+e}, v{8+e}, v{8+e} row_ror:8 row_mask:0xf bank_mask:0xf")
    for e in range(8):
        a(f"v_mov_b32 v{40+e}, v{8+e}")
    a("s_nop 1")
    for e in range(8):
        a(f"v_permlane32_swap_b32 v{8+e}, v{40+e}")
    a("s_nop 1")
    for e in range(8):
        a(f"v_add_f32 v{8+e}, v{8+e}, v{40+e}")
    for e in range(8):
        a(f"v_mov_b32 v{40+e}, v{8+e}")
    a("s_nop 1")
    for e in range(8):
        a(f"v_permlane16_swap_b32 v{8+e}, v{40+e}")
    a("s_nop 1")
    for e in range(8):
        a(f"v_add_f32 v{8+e}, v{8+e}, v{40+e}")
    a(f"s_mov_b32 s14, {f32hex(-1.4426950408889634)}")
    for e in range(4):
        s_, f_, t = 8+e, 12+e, 16+e
        rne(a, s_, s_)
        rne(a, f_, f_)
        a(f"v_mul_f32 v{t}, s14, v{f_}")
        a(f"v_exp_f32 v{t}, v{t}")
        a("s_nop 0")
        a(f"v_add_f32 v{t}, 1.0, v{t}")
        a(f"v_rcp_f32 v{t}, v{t}")
        a("s_nop 0")
        a(f"v_mul_f32 v{t}, v{t}, v{f_}")
        rne(a, t, t)
        a(f"v_mul_f32 v{t}, v{t}, v{s_}")
        rne(a, t, t)
        xr = 140 + e // 2
        if e % 2 == 0:
            a(f"v_lshlrev_b32 v{s_}, 16, v{xr}")
        else:
            a(f"v_and_b32 v{s_}, 0xffff0000, v{xr}")
        a(f"v_add_f32 v{t}, v{t}, v{s_}")
    a("v_cvt_pk_bf16_f32 v20, v16, v17")
    a("v_cvt_pk_bf16_f32 v21, v18, v19")
    a("s_mov_b64 exec, 0xff")
    a(f"buffer_store_dwordx2 v[20:21], v4, {srd(SRD_OUT)}, s13 offen")
    stamp(a, 4)
    stamp_flush(a)

def gen(path, depth=8):
    a = A()
    hdr = open("recurrent_scan__gqa_block_cached__glu_gated_geglu__decode.s.ref").read().split("\n")
    top = [l for l in hdr if l.startswith(";") and "@launch" not in l]
    out = top + [f"; @launch grid=(256,1,1) block=(768,1,1) lds={LDS_BYTES}"]
    out += ['.amdgcn_target "amdgcn-amd-amdhsa--gfx950"', ".text", f".globl {NAME}", ".p2align 8",
            f".type {NAME},@function", f"{NAME}:"]
    a("s_cmp_ge_u32 s2, 256")
    a("s_cbranch_scc1 L_end")
    a("s_load_dwordx16 s[16:31], s[0:1], 0")
    a("s_load_dwordx8 s[32:39], s[0:1], 64")
    a("v_lshrrev_b32 v1, 6, v0")
    a("v_and_b32 v0, 63, v0")
    a("s_nop 0")
    a("v_readfirstlane_b32 s3, v1")
    a("s_and_b32 s4, s2, 7")
    a("s_lshr_b32 s5, s2, 3")
    a("s_lshl_b32 s96, s4, 5")
    a("s_add_u32 s96, s96, s5")
    a("s_mul_i32 s97, s4, 28")
    a("s_add_u32 s97, s97, s5")
    a(f"s_mov_b32 s{S_SELLO}, 0x05040100")
    a(f"s_mov_b32 s{S_SELHI}, 0x07060302")
    a(f"s_mov_b32 s{S_SCALE}, {f32hex(128 ** -0.5)}")
    a(f"s_mov_b32 s{S_LOG2E}, {f32hex(1.4426950408889634)}")
    a(f"s_mov_b32 s{S_MFF}, 0xff")
    a(f"s_mov_b32 s{S_MFFF}, 0xfff")
    a(f"s_mov_b32 s{S_PA}, 0x0c0c0400")
    a(f"s_mov_b32 s{S_PB}, 0x04000c0c")
    a("s_waitcnt lgkmcnt(0)")
    a(f"s_load_dword s{S_TAG}, s[38:39], {EPOCH}")
    mk_srd(a, SRD_K, 18, 0x2000000)
    mk_srd(a, SRD_V, 20, 0x2000000)
    mk_srd(a, SRD_WS, 38, 0x10000000)
    mk_srd(a, SRD_X, 16, 8192)
    mk_srd(a, SRD_OUT, 34, 8192)
    if STAMPS:
        for i in range(16): a(f"s_mov_b32 s{72+i}, 0")
    stamp(a, 0)
    a("s_cmp_ge_u32 s3, 8")
    a("s_cbranch_scc1 L_notattn")

    K0, V0, Q0, S0 = 8, 72, 136, 152
    a("s_lshl_b32 s6, s96, 17")
    a("s_lshl_b32 s5, s3, 14")
    a("s_add_u32 s6, s6, s5")
    a("v_and_b32 v2, 15, v0")
    a("v_lshrrev_b32 v3, 4, v0")
    a("v_lshlrev_b32 v4, 8, v2")
    a("v_lshl_add_u32 v4, v3, 4, v4")
    a("v_lshlrev_b32 v5, 10, v3")
    a("v_lshl_add_u32 v5, v2, 4, v5")
    loads = []
    for kt in range(4):
        for c in range(4):
            loads.append((SRD_K, 4, K0+16*kt+4*c, kt*4096, c*64))
    for u in range(2):
        for i in range(8):
            loads.append((SRD_V, 5, V0+32*u+4*i, u*8192+(i >> 2)*4096, (i & 3)*256))
    for n, (sr, vo, dst, so, io) in enumerate(loads):
        if n == ABAR:
            a("s_waitcnt lgkmcnt(0)")
            a("s_barrier")
        dd = depth if n < VFROM else VDEPTH
        if n >= dd:
            a(f"s_waitcnt vmcnt({dd-1})")
        a(f"s_add_u32 s7, s6, {so}")
        a(f"buffer_load_dwordx4 {vr(dst)}, v{vo}, {srd(sr)}, s7 offen offset:{io} nt")
        if NOPOLL and n == QTRIG:
            lds_inc(a, L_KISS)
    a(f"s_add_u32 s{S_TAG}, s{S_TAG}, 1")
    stamp(a, 1)
    if STRIP:
        a("s_waitcnt vmcnt(0)")
        stamp(a, 5)
        stamp_flush(a)
        a("s_endpgm")
    lds_inc(a, L_ISS)
    lds_wait(a, L_QRDY, 1)
    stamp(a, 2)
    a("v_and_b32 v2, 7, v0")
    a("v_lshlrev_b32 v2, 8, v2")
    a("v_lshrrev_b32 v3, 4, v0")
    a("v_lshl_add_u32 v2, v3, 4, v2")
    for c in range(4):
        a(f"ds_read_b128 {vr(Q0+4*c)}, v2 offset:{L_QS + 64*c}")
    a("s_waitcnt vmcnt(16) lgkmcnt(0)")
    stamp(a, 3)
    for kt in range(4):
        for c in range(4):
            cc = "0" if c == 0 else vr(S0+4*kt)
            a(f"v_mfma_f32_16x16x32_bf16 {vr(S0+4*kt)}, {vr(K0+16*kt+4*c)}, {vr(Q0+4*c)}, {cc}")
    a("s_nop 7")
    a("s_nop 1")
    for p in range(8):
        x, y = S0+2*p, S0+2*p+1
        a(f"v_cvt_pk_bf16_f32 v2, v{x}, v{y}")
        a(f"v_lshlrev_b32 v{x}, 16, v2")
        a(f"v_and_b32 v{y}, 0xffff0000, v2")
        a(f"v_mul_f32 v{x}, s{S_SCALE}, v{x}")
        a(f"v_mul_f32 v{y}, s{S_SCALE}, v{y}")
        a(f"v_cvt_pk_bf16_f32 v2, v{x}, v{y}")
        a(f"v_lshlrev_b32 v{x}, 16, v2")
        a(f"v_and_b32 v{y}, 0xffff0000, v2")
    a(f"v_max3_f32 v6, v{S0}, v{S0+1}, v{S0+2}")
    for i in range(3, 15, 2):
        a(f"v_max3_f32 v6, v6, v{S0+i}, v{S0+i+1}")
    a(f"v_max_f32 v6, v6, v{S0+15}")
    xg_reduce(a, 6, 7, "v_max_f32")
    a(f"v_mul_f32 v6, s{S_LOG2E}, v6")
    for i in range(16):
        a(f"v_fma_f32 v{S0+i}, v{S0+i}, s{S_LOG2E}, -v6")
    for i in range(16):
        a(f"v_exp_f32 v{S0+i}, v{S0+i}")
    a("s_nop 0")
    a(f"v_add_f32 v7, v{S0}, v{S0+1}")
    for i in range(2, 16):
        a(f"v_add_f32 v7, v7, v{S0+i}")
    xg_reduce(a, 7, 2, "v_add_f32")
    P0 = 56
    for u in range(2):
        for q in range(4):
            a(f"v_cvt_pk_bf16_f32 v{P0+4*u+q}, v{S0+8*u+2*q}, v{S0+8*u+2*q+1}")
    stamp(a, 4)
    O0, TB0 = 8, 40
    for u in range(2):
        a(f"s_waitcnt vmcnt({8 if u == 0 else 0})")
        for w in range(4):
            TB = TB0 + 8*(w % 2)
            for p in range(4):
                a(f"v_perm_b32 v{TB+p}, v{V0+32*u+4*(2*p+1)+w}, v{V0+32*u+4*(2*p)+w}, s{S_SELLO}")
            for p in range(4):
                a(f"v_perm_b32 v{TB+4+p}, v{V0+32*u+4*(2*p+1)+w}, v{V0+32*u+4*(2*p)+w}, s{S_SELHI}")
            a("s_nop 1")
            for h in range(2):
                t = 2*w+h
                cc = "0" if u == 0 else vr(O0+4*t)
                a(f"v_mfma_f32_16x16x32_bf16 {vr(O0+4*t)}, {vr(P0+4*u)}, {vr(TB+4*h)}, {cc}")
    a("s_nop 7")
    a("s_nop 1")
    R0 = 72
    for r in range(4):
        for t in range(8):
            a(f"v_mov_b32 v{R0+8*r+t}, v{O0+4*t+r}")
    a("v_lshrrev_b32 v2, 4, v0")
    a("v_lshlrev_b32 v2, 11, v2")
    a("v_and_b32 v3, 15, v0")
    a("v_lshl_add_u32 v2, v3, 5, v2")
    a("s_lshl_b32 s5, s3, 12")
    a("v_add_u32 v2, s5, v2")
    a("s_mov_b32 exec_lo, -1"); a("s_mov_b32 exec_hi, 0")
    for r in range(4):
        a(f"ds_write_b128 v2, {vr(R0+8*r)} offset:{L_OP + r*512}")
        a(f"ds_write_b128 v2, {vr(R0+8*r+4)} offset:{L_OP + r*512 + 16}")
    a("s_mov_b64 exec, -1")
    a("v_and_b32 v2, 7, v0")
    a("v_lshlrev_b32 v2, 3, v2")
    a("s_lshl_b32 s5, s3, 6")
    a("v_add_u32 v2, s5, v2")
    a(f"ds_write_b64 v2, v[6:7] offset:{L_ML}")
    stamp(a, 5)
    lds_inc(a, L_OCNT)
    lds_wait(a, L_OCNT, 8)
    stamp(a, 6)
    a("s_lshl_b32 s5, s3, 3")
    a("v_mov_b32 v2, s5")
    for w in range(8):
        a(f"ds_read_b64 v[{8+2*w}:{9+2*w}], v2 offset:{L_ML + w*64}")
    a("s_lshl_b32 s5, s3, 9")
    a("v_and_b32 v3, 31, v0")
    a("v_lshlrev_b32 v3, 4, v3")
    a("v_add_u32 v3, s5, v3")
    for w in range(8):
        a(f"ds_read_b128 {vr(24+4*w)}, v3 offset:{L_OP + w*4096}")
    tag_setup(a, 64)
    a("s_waitcnt lgkmcnt(8)")
    a("v_max3_f32 v4, v8, v10, v12")
    a("v_max3_f32 v4, v4, v14, v16")
    a("v_max3_f32 v4, v4, v18, v20")
    a("v_max_f32 v4, v4, v22")
    for w in range(8):
        a(f"v_sub_f32 v{8+2*w}, v{8+2*w}, v4")
    for w in range(8):
        a(f"v_exp_f32 v{8+2*w}, v{8+2*w}")
    a("s_waitcnt lgkmcnt(0)")
    a("v_mul_f32 v5, v8, v9")
    for e in range(4):
        a(f"v_mul_f32 v{60+e}, v8, v{24+e}")
    for w in range(1, 8):
        a(f"v_fmac_f32 v5, v{8+2*w}, v{9+2*w}")
        for e in range(4):
            a(f"v_fmac_f32 v{60+e}, v{8+2*w}, v{24+4*w+e}")
    tag_apply(a, 60, 64)
    a("s_lshr_b32 s5, s96, 4")
    a("s_and_b32 s5, s5, 3")
    a("s_lshl_b32 s5, s5, 3")
    a("s_add_u32 s5, s5, s3")
    a("s_lshl_b32 s5, s5, 2")
    a("s_lshr_b32 s6, s96, 6")
    a("s_add_u32 s5, s5, s6")
    a("s_lshl_b32 s5, s5, 4")
    a("s_and_b32 s6, s96, 15")
    a("s_add_u32 s5, s5, s6")
    a("s_lshl_b32 s5, s5, 10")
    a(f"s_add_u32 s5, s5, {OREC}")
    a("v_lshlrev_b32 v3, 4, v0")
    a(f"v_mov_b32 v6, s{S_TAG}")
    a(f"v_mov_b32 v7, s{S_TAG}")
    a("s_mov_b32 exec_lo, -1"); a("s_mov_b32 exec_hi, 0")
    a(f"buffer_store_dwordx4 v[60:63], v3, {srd(SRD_WS)}, s5 offen sc1")
    a("s_mov_b64 exec, 1")
    a(f"buffer_store_dwordx4 v[4:7], v3, {srd(SRD_WS)}, s5 offen offset:512 sc1")
    if OFLAG:
        a(f"s_sub_u32 s6, s5, {OREC}")
        a("s_lshr_b32 s6, s6, 8")
        a(f"s_add_u32 s6, s6, {FO}")
        a(f"buffer_store_dword v6, v3, {srd(SRD_WS)}, s6 offen sc1")
    a("s_mov_b64 exec, -1")
    lds_inc(a, L_REC)
    if OPAR:
        stamp(a, 7)
        a("s_lshr_b32 s12, s96, 3")
        a("s_lshl_b32 s12, s12, 16")
        a(f"s_add_u32 s12, s12, {OREC}")
        a("s_lshl_b32 s13, s3, 6")
        a("s_add_u32 s13, s13, s12")
        a("v_lshlrev_b32 v6, 10, v0")
        def body(fl):
            a(f"buffer_load_dwordx4 v[8:11], v6, {srd(SRD_WS)}, s12 offen offset:512 {fl}")
            for q in range(4):
                a(f"buffer_load_dwordx4 {vr(12+4*q)}, v6, {srd(SRD_WS)}, s13 offen offset:{16*q} {fl}")
            a("s_mov_b64 exec, -1")
            a("s_waitcnt vmcnt(0)")
            a(f"v_xor_b32 v30, s{S_TAG}, v10")
            for q in range(4):
                tag_check(a, 12+4*q, 30, 31, 32)
            a("v_cmp_ne_u32 vcc, 0, v30")
            a("s_nop 3")
            a("s_cmp_eq_u64 vcc, 0")
        lp = a.uniq("og"); dn = a.uniq("ogd")
        body("")
        if not NOSYNC:
            a(f"s_cbranch_scc1 {dn}")
            a(f"s_mov_b32 s{S_TMO}, 100000")
            a.label(lp)
            a(f"s_sleep {OSLEEP}")
            a("s_mov_b64 exec, vcc")
            body("sc1")
            a(f"s_cbranch_scc1 {dn}")
            a(f"s_sub_u32 s{S_TMO}, s{S_TMO}, 1")
            a(f"s_cmp_lg_u32 s{S_TMO}, 0")
            a(f"s_cbranch_scc1 {lp}")
            a.label(dn)
        stamp(a, 8)
        a("v_mov_b32 v30, v8")
        row_reduce_max(a, 30)
        a("v_sub_f32 v8, v8, v30")
        a("v_exp_f32 v8, v8")
        a("s_nop 0")
        a("v_mul_f32 v9, v8, v9")
        row_reduce_add(a, 9)
        a("v_rcp_f32 v9, v9")
        a("s_nop 0")
        a("v_mul_f32 v8, v8, v9")
        for e in range(16):
            a(f"v_mul_f32 v{12+e}, v{12+e}, v8")
        for r in (8, 4, 2, 1):
            for e in range(16):
                a(f"v_add_f32_dpp v{12+e}, v{12+e}, v{12+e} row_ror:{r} row_mask:0xf bank_mask:0xf")
        for q in range(8):
            a(f"v_cvt_pk_bf16_f32 v{32+q}, v{12+2*q}, v{13+2*q}")
        a("v_lshrrev_b32 v2, 4, v0")
        a("v_lshlrev_b32 v2, 8, v2")
        a("s_lshl_b32 s5, s3, 5")
        a("v_add_u32 v2, s5, v2")
        a("s_mov_b32 exec_lo, 0x00010001")
        a("s_mov_b32 exec_hi, 0x00010001")
        a(f"ds_write_b128 v2, v[32:35] offset:{L_AF}")
        a(f"ds_write_b128 v2, v[36:39] offset:{L_AF+16}")
        a("s_mov_b64 exec, -1")
        lds_inc(a, L_OAF)
        stamp(a, 9)
        stamp_flush(a)
        a("s_endpgm")
    stamp(a, 7)
    stamp_flush(a)
    a("s_endpgm")

    a.label("L_notattn")
    if PRIO:
        a("s_setprio 3")
    a("s_cmp_eq_u32 s3, 11")
    a("s_cbranch_scc1 L_comm")
    a("s_cmp_eq_u32 s3, 8")
    a("s_cbranch_scc1 L_w8")
    a("s_cmp_lt_u32 s2, 224")
    a("s_cbranch_scc1 L_ffn")
    a("s_waitcnt lgkmcnt(0)")
    a("s_barrier")
    a("s_endpgm")
    a.label("L_ffn")
    a("s_cmp_eq_u32 s3, 9")
    a("s_cselect_b32 s52, s28, s30")
    a("s_cselect_b32 s53, s29, s31")
    a(f"s_mov_b32 s54, {1024*3584*2}")
    a("s_mov_b32 s55, 0x00020000")
    a("s_lshr_b32 s8, s2, 3")
    a("s_and_b32 s9, s2, 7")
    a("s_lshl_b32 s10, s9, 8")
    ln_issue(a, 10)
    wjob_voff(a, 7168)
    a(f"s_mul_i32 s11, s9, {128*7168}")
    a("s_lshl_b32 s12, s8, 8")
    a("s_add_u32 s11, s11, s12")
    a("s_sub_u32 s13, s3, 8")
    a("s_lshl_b32 s13, s13, 15")
    a(f"s_add_u32 s13, s13, {L_WT}")
    def mid_ffn():
        a(f"s_add_u32 s{S_TAG}, s{S_TAG}, 1")
        a(f"s_waitcnt vmcnt({min(WPACE,32)})")
        stamp(a, 1)
        a("v_mov_b32 v160, v1")
        ln_compute(a)
        a("v_mov_b32 v1, v160")
        stamp(a, 2)
    def gate_ffn():
        if GATE_GU:
            lds_wait(a, L_QJ, 1)
    wjob_issue(a, 7168, 11, None, pace=WPACE, barrier=True, dyn=13, mid=mid_ffn, gate=gate_ffn, bar_at=FBAR)
    a("s_waitcnt vmcnt(0)")
    if STRIP == 1:
        a("s_endpgm")
    a("v_lshlrev_b32 v2, 4, v0")
    a("v_add_u32 v3, s13, v2")
    stamp(a, 3)
    wjob_consume_dyn(a)
    a("s_sub_u32 s12, s3, 9")
    a("s_mul_i32 s14, s12, 458752")
    a("s_mul_i32 s15, s9, 57344")
    a("s_add_u32 s14, s14, s15")
    a("s_lshl_b32 s15, s8, 9")
    a("s_add_u32 s14, s14, s15")
    a(f"s_add_u32 s14, s14, {GUP}")
    a("s_lshl_b32 s15, s8, 4")
    a("s_lshl_b32 s12, s12, 3")
    a("s_add_u32 s15, s15, s12")
    a("s_add_u32 s15, s15, s9")
    a("s_lshl_b32 s15, s15, 2")
    a(f"s_add_u32 s15, s15, {FGU}")
    wjob_store(a, 14, 14336, 15, flag=not NOPOLL)
    stamp(a, 4)
    if STRIP:
        a("s_endpgm")
    a("s_cmp_eq_u32 s3, 9")
    a("s_cbranch_scc1 L_down")
    stamp_flush(a)
    if DN10:
        a("s_mov_b64 exec, -1")
        a("s_lshr_b32 s8, s97, 3")
        a("s_and_b32 s9, s97, 7")
        mk_srd(a, SRD_W, 32, 3584*1024*2)
        wjob_voff(a, 2048)
        a(f"s_mul_i32 s11, s8, {128*2048}")
        a("s_lshl_b32 s12, s9, 8")
        a("s_add_u32 s11, s11, s12")
        lds_wait(a, L_GO, 1)
        wjob_issue(a, 2048, 11, L_WT + 0x10000, pace=TPACE)
        a("s_waitcnt vmcnt(0)")
        lds_inc(a, L_DNL)
    a("s_endpgm")

    a.label("L_down")
    a("s_lshr_b32 s8, s97, 3")
    a("s_and_b32 s9, s97, 7")
    mk_srd(a, SRD_W, 32, 3584*1024*2)
    a("s_lshl_b32 s12, s8, 6")
    a(f"s_add_u32 s12, s12, {FGU}")
    a("v_lshlrev_b32 v6, 2, v0")
    if NOPOLL:
        if HTRIG:
            lds_wait(a, L_QRDY, 1)
        else:
            lds_wait(a, L_ISS, 8)
    else:
        poll_flags(a, 6, 12, 7, execmask="0xffff")
    stamp(a, 5)
    a("v_lshrrev_b32 v2, 4, v0")
    a("v_mul_u32_u24 v2, 14336, v2")
    a("v_and_b32 v3, 15, v0")
    a("v_lshl_add_u32 v2, v3, 4, v2")
    a("s_lshl_b32 s12, s8, 9")
    a(f"s_add_u32 s12, s12, {GUP}")
    G = 8
    def emit(fl):
        for mat in range(2):
            for sp in range(8):
                a(f"s_add_u32 s5, s12, {mat*458752 + sp*57344}")
                a(f"buffer_load_dwordx4 {vr(G+64*mat+8*sp)}, v2, {srd(SRD_WS)}, s5 offen {fl}")
                a(f"buffer_load_dwordx4 {vr(G+64*mat+8*sp+4)}, v2, {srd(SRD_WS)}, s5 offen offset:256 {fl}")
        for q in range(32):
            a(f"s_waitcnt vmcnt({31-q})")
            tag_check(a, G+4*q, 136, 137, 138, first=(q == 0))
    gather(a, emit, 136)
    for mat in range(2):
        for sp in range(1, 8):
            for e in range(8):
                a(f"v_add_f32 v{G+64*mat+e}, v{G+64*mat+e}, v{G+64*mat+8*sp+e}")
    c1 = 0.044715
    c2 = -2.0 * 0.7978845608028654 * 1.4426950408889634
    a(f"s_mov_b32 s12, {f32hex(c1)}")
    a(f"s_mov_b32 s13, {f32hex(c2)}")
    for e in range(8):
        g, u, t = G+e, G+64+e, 16+e
        rne(a, g, g)
        rne(a, u, u)
        a(f"v_mul_f32 v{t}, v{g}, v{g}")
        a(f"v_mul_f32 v{t}, v{t}, v{g}")
        a(f"v_fma_f32 v{t}, v{t}, s12, v{g}")
        a(f"v_mul_f32 v{t}, s13, v{t}")
        a(f"v_exp_f32 v{t}, v{t}")
        a("s_nop 0")
        a(f"v_add_f32 v{t}, 1.0, v{t}")
        a(f"v_rcp_f32 v{t}, v{t}")
        a("s_nop 0")
        a(f"v_mul_f32 v{t}, v{t}, v{g}")
        rne(a, t, t)
        a(f"v_mul_f32 v{t}, v{t}, v{u}")
    for q in range(4):
        a(f"v_cvt_pk_bf16_f32 v{24+q}, v{16+2*q}, v{17+2*q}")
    stamp(a, 6)
    af_via_lds(a, 24, L_AF + 1024)
    if DN10:
        lds_wait(a, L_DNL, 1)
        stamp(a, 8)
        wjob_consume(a, L_WT + 0x10000)
    else:
        wjob_voff(a, 2048)
        lds_wait(a, L_GO, 1)
        a(f"s_mul_i32 s11, s8, {128*2048}")
        a("s_lshl_b32 s12, s9, 8")
        a("s_add_u32 s11, s11, s12")
        wjob_issue(a, 2048, 11, L_WT + 0x8000, pace=TPACE)
        a("s_waitcnt vmcnt(0)")
        stamp(a, 8)
        wjob_consume(a, L_WT + 0x8000)
    a("s_lshl_b32 s14, s9, 17")
    a("s_add_u32 s15, s8, 32")
    a("s_lshl_b32 s12, s15, 11")
    a("s_add_u32 s14, s14, s12")
    a(f"s_add_u32 s14, s14, {SP}")
    a("s_lshl_b32 s12, s9, 6")
    a("s_add_u32 s15, s15, s12")
    a("s_lshl_b32 s15, s15, 2")
    a(f"s_add_u32 s15, s15, {FS}")
    wjob_store(a, 14, 512, 15, flag=not FDIRECT, t12=bool(T12))
    stamp(a, 7)
    stamp_flush(a)
    a("s_endpgm")

    a.label("L_w8")
    mk_srd(a, SRD_W, 22, 1024*4096*2)
    a("s_lshr_b32 s8, s2, 3")
    a("s_and_b32 s9, s2, 7")
    a("s_lshl_b32 s10, s9, 8")
    ln_issue(a, 10)
    wjob_voff(a, 8192)
    a(f"s_mul_i32 s11, s9, {128*8192}")
    a("s_lshl_b32 s12, s8, 8")
    a("s_add_u32 s11, s11, s12")
    def mid_q():
        a(f"s_add_u32 s{S_TAG}, s{S_TAG}, 1")
        a(f"s_waitcnt vmcnt({min(QPACE,32)})")
        stamp(a, 1)
        ln_compute(a)
        stamp(a, 2)
    wjob_issue(a, 8192, 11, L_WT, pace=QPACE, barrier=True, mid=mid_q, bar_at=32)
    a("s_waitcnt vmcnt(0)")
    if GATE_GU:
        lds_inc(a, L_QJ)
    if STRIP == 1:
        a("s_endpgm")
    stamp(a, 3)
    wjob_consume(a, L_WT)
    a("s_lshl_b32 s14, s9, 16")
    a("s_lshl_b32 s15, s8, 9")
    a("s_add_u32 s14, s14, s15")
    a(f"s_add_u32 s14, s14, {QP}")
    a("s_lshl_b32 s15, s2, 2")
    a(f"s_add_u32 s15, s15, {FQ}")
    wjob_store(a, 14, 16384, 15, flag=not NOPOLL)
    if QWAIT:
        lds_inc(a, L_QJ)
    stamp(a, 4)
    if STRIP:
        a("s_endpgm")
    a("s_lshr_b32 s8, s96, 3")
    a("s_and_b32 s9, s96, 7")
    mk_srd(a, SRD_W, 24, 4096*1024*2)
    wjob_voff(a, 2048)
    a("s_lshl_b32 s12, s8, 16")
    a(f"s_add_u32 s12, s12, {OREC}")
    a("v_lshlrev_b32 v6, 10, v0")
    a("v_add_u32 v6, 512, v6")
    if OPAR:
        lds_wait(a, L_REC, GOREC)
        stamp(a, 8)
        lds_inc(a, L_GO)
        a(f"s_mul_i32 s11, s8, {128*2048}")
        a("s_lshl_b32 s13, s9, 8")
        a("s_add_u32 s11, s11, s13")
        wjob_issue(a, 2048, 11, L_WT, pace=TPACE)
        a("s_waitcnt vmcnt(0)")
        stamp(a, 5)
        lds_wait(a, L_OAF, 8)
        stamp(a, 6)
        a("v_and_b32 v2, 3, v0")
        a("v_lshlrev_b32 v2, 8, v2")
        a("v_lshrrev_b32 v3, 4, v0")
        a("v_lshlrev_b32 v3, 4, v3")
        a("v_add_u32 v2, v2, v3")
        for tb in range(4):
            a(f"ds_read_b128 {vr(W_AF+4*tb)}, v2 offset:{L_AF + 64*tb}")
        a("s_waitcnt lgkmcnt(0)")
    else:
        a("s_lshl_b32 s10, s8, 8")
        a(f"s_add_u32 s10, s10, {FO}")
        a("v_lshlrev_b32 v7, 2, v0")
        if TEARLY:
            lds_wait(a, L_ISS if TEARLY <= 8 else L_OCNT, TEARLY if TEARLY <= 8 else TEARLY - 8)
        else:
            lds_wait(a, L_REC, 8)
        if not NOSYNC and not TEARLY:
            lp = a.uniq("pa"); dn = a.uniq("pad")
            a(f"s_mov_b32 s{S_TMO}, 100000")
            a.label(lp)
            if OFLAG:
                a(f"buffer_load_dword v138, v7, {srd(SRD_WS)}, s10 offen sc1")
            else:
                a(f"buffer_load_dwordx4 {vr(136)}, v6, {srd(SRD_WS)}, s12 offen sc1")
            a("s_waitcnt vmcnt(0)")
            a(f"v_cmp_eq_u32 vcc, s{S_TAG}, v138")
            a("s_nop 3")
            a("s_bcnt1_i32_b64 s4, vcc")
            a(f"s_cmp_ge_u32 s4, {THR}")
            a(f"s_cbranch_scc1 {dn}")
            a(f"s_sleep {PSLEEP}")
            a(f"s_sub_u32 s{S_TMO}, s{S_TMO}, 1")
            a(f"s_cmp_lg_u32 s{S_TMO}, 0")
            a(f"s_cbranch_scc1 {lp}")
            a.label(dn)
        stamp(a, 8)
        lds_inc(a, L_GO)
        a(f"s_mul_i32 s11, s8, {128*2048}")
        a("s_lshl_b32 s13, s9, 8")
        a("s_add_u32 s11, s11, s13")
        wjob_issue(a, 2048, 11, L_WT, pace=TPACE)
        if TEARLY:
            lds_wait(a, L_REC, 8)
        if MASKG:
            lp = a.uniq("pa"); dn = a.uniq("pad")
            a(f"s_mov_b32 s{S_TMO}, 100000")
            a.label(lp)
            a(f"buffer_load_dwordx4 {vr(136)}, v6, {srd(SRD_WS)}, s12 offen sc1")
            a("s_waitcnt vmcnt(0)")
            a(f"v_cmp_eq_u32 vcc, s{S_TAG}, v138")
            a("s_nop 3")
            a("s_bcnt1_i32_b64 s4, vcc")
            a(f"s_cmp_ge_u32 s4, {THR2}")
            a(f"s_cbranch_scc1 {dn}")
            a(f"s_sleep {PSLEEP}")
            a(f"s_sub_u32 s{S_TMO}, s{S_TMO}, 1")
            a(f"s_cmp_lg_u32 s{S_TMO}, 0")
            a(f"s_cbranch_scc1 {lp}")
            a.label(dn)
            stamp(a, 5)
            a("v_lshrrev_b32 v2, 4, v0")
            a("v_lshlrev_b32 v2, 14, v2")
            a("v_and_b32 v3, 15, v0")
            a("v_lshl_add_u32 v2, v3, 5, v2")
            FM = [16 + 2*i for i in range(12)] + [44, 46, 48, 50]
            def pas(fl, masked):
                a(f"buffer_load_dwordx4 {vr(136)}, v6, {srd(SRD_WS)}, s12 offen sc1")
                for s_ in range(16):
                    sk = a.uniq("sk")
                    if masked:
                        a(f"s_mov_b64 exec, s[{FM[s_]}:{FM[s_]+1}]")
                        a(f"s_cbranch_execz {sk}")
                    a(f"s_add_u32 s5, s12, {s_*1024}")
                    a(f"buffer_load_dwordx4 {vr(8+8*s_)}, v2, {srd(SRD_WS)}, s5 offen {fl}")
                    a(f"buffer_load_dwordx4 {vr(8+8*s_+4)}, v2, {srd(SRD_WS)}, s5 offen offset:16 {fl}")
                    if masked:
                        a.label(sk)
                a("s_mov_b64 exec, -1")
                a("s_waitcnt vmcnt(0)")
                a(f"v_cmp_ne_u32 s[6:7], s{S_TAG}, v138")
                for s_ in range(16):
                    tag_check(a, 8+8*s_, 140, 141, 142, first=True)
                    tag_check(a, 8+8*s_+4, 140, 141, 142)
                    a(f"v_cmp_ne_u32 s[{FM[s_]}:{FM[s_]+1}], 0, v140")
                a("s_nop 3")
                for s_ in range(16):
                    a(f"s_or_b64 s[6:7], s[6:7], s[{FM[s_]}:{FM[s_]+1}]")
                a("s_cmp_eq_u64 s[6:7], 0")
            lp = a.uniq("og"); dn = a.uniq("ogd")
            pas("", False)
            a(f"s_cbranch_scc1 {dn}")
            a(f"s_mov_b32 s{S_TMO}, 100000")
            a.label(lp)
            pas("sc1", True)
            a(f"s_cbranch_scc1 {dn}")
            a(f"s_sub_u32 s{S_TMO}, s{S_TMO}, 1")
            a(f"s_cmp_lg_u32 s{S_TMO}, 0")
            a(f"s_cbranch_scc1 {lp}")
            a.label(dn)
            a("v_mov_b32 v138, v136")
            row_reduce_max(a, 138)
            a("v_sub_f32 v136, v136, v138")
            a("v_exp_f32 v136, v136")
            a("s_nop 0")
            a("v_mul_f32 v137, v136, v137")
            row_reduce_add(a, 137)
            a("v_rcp_f32 v137, v137")
            a("s_nop 0")
            a("v_mul_f32 v136, v136, v137")
            a("s_nop 1")
            for s_ in range(16):
                a(f"v_mov_b32_dpp v{140+s_}, v136 row_newbcast:{s_} row_mask:0xf bank_mask:0xf")
        else:
            if OFLAG:
                poll_flags(a, 7, 10, 138)
                poll_flags(a, 6, 12, 136, width=4, tagreg_idx=2)
            else:
                poll_flags(a, 6, 12, 136, width=4, tagreg_idx=2)
            stamp(a, 5)
            a("v_mov_b32 v138, v136")
            row_reduce_max(a, 138)
            a("v_sub_f32 v136, v136, v138")
            a("v_exp_f32 v136, v136")
            a("s_nop 0")
            a("v_mul_f32 v137, v136, v137")
            row_reduce_add(a, 137)
            a("v_rcp_f32 v137, v137")
            a("s_nop 0")
            a("v_mul_f32 v136, v136, v137")
            a("v_lshrrev_b32 v2, 4, v0")
            a("v_lshlrev_b32 v2, 14, v2")
            a("v_and_b32 v3, 15, v0")
            a("v_lshl_add_u32 v2, v3, 5, v2")
            for s in range(16):
                a(f"v_mov_b32_dpp v{140+s}, v136 row_newbcast:{s} row_mask:0xf bank_mask:0xf")
            def emit(fl):
                for s in range(16):
                    a(f"s_add_u32 s5, s12, {s*1024}")
                    a(f"buffer_load_dwordx4 {vr(8+8*s)}, v2, {srd(SRD_WS)}, s5 offen {fl}")
                    a(f"buffer_load_dwordx4 {vr(8+8*s+4)}, v2, {srd(SRD_WS)}, s5 offen offset:16 {fl}")
                for q in range(32):
                    a(f"s_waitcnt vmcnt({31-q})")
                    tag_check(a, 8+4*q, 136, 137, 138, first=(q == 0))
            gather(a, emit, 136)
        for e in range(8):
            a(f"v_mul_f32 v{8+e}, v{8+e}, v140")
        for s in range(1, 16):
            for e in range(8):
                a(f"v_fmac_f32 v{8+e}, v{8+8*s+e}, v{140+s}")
        for q in range(4):
            a(f"v_cvt_pk_bf16_f32 v{24+q}, v{8+2*q}, v{9+2*q}")
        stamp(a, 6)
        af_via_lds(a, 24, L_AF)
    wjob_consume(a, L_WT)
    a("s_lshl_b32 s14, s9, 17")
    a("s_lshl_b32 s12, s8, 11")
    a("s_add_u32 s14, s14, s12")
    a(f"s_add_u32 s14, s14, {SP}")
    a("s_lshl_b32 s12, s9, 6")
    a("s_add_u32 s15, s8, s12")
    a("s_lshl_b32 s15, s15, 2")
    a(f"s_add_u32 s15, s15, {FS}")
    wjob_store(a, 14, 512, 15, flag=not FDIRECT, t12=bool(T12))
    stamp(a, 7)
    stamp_flush(a)
    a("s_endpgm")

    a.label("L_comm")
    if DBGT:
        a("s_memrealtime s[98:99]")
    a("v_mov_b32 v2, 0")
    a("v_lshlrev_b32 v3, 2, v0")
    a("ds_write_b32 v3, v2")
    a("s_waitcnt lgkmcnt(0)")
    a("s_barrier")
    a(f"s_add_u32 s{S_TAG}, s{S_TAG}, 1")
    if STRIP in (1, 2):
        a("s_endpgm")
    a("s_lshr_b32 s8, s96, 4")
    a("s_and_b32 s8, s8, 3")
    a("s_lshr_b32 s9, s96, 6")
    a("s_lshl_b32 s12, s8, 8")
    a(f"s_add_u32 s12, s12, {FQ}")
    if NOPOLL:
        lds_wait(a, L_KISS, QTHR)
    else:
        if QWAIT:
            lds_wait(a, L_QJ, 1)
        a("v_lshlrev_b32 v6, 2, v0")
        poll_flags(a, 6, 12, 7)
    stamp(a, 1)
    if NOGATH:
        a("s_endpgm")
    a("s_lshl_b32 s12, s9, 14")
    a("s_lshl_b32 s13, s8, 12")
    a("s_add_u32 s12, s12, s13")
    a(f"s_add_u32 s12, s12, {QP}")
    a("v_lshlrev_b32 v2, 4, v0")
    def emit(fl):
        for sp in range(8):
            a(f"s_add_u32 s5, s12, {sp*65536}")
            for q in range(4):
                a(f"buffer_load_dwordx4 {vr(8+16*sp+4*q)}, v2, {srd(SRD_WS)}, s5 offen offset:{1024*q} {fl}")
        for q in range(32):
            a(f"s_waitcnt vmcnt({31-q})")
            tag_check(a, 8+4*q, 136, 137, 138, first=(q == 0))
    gather(a, emit, 136)
    for sp in range(1, 8):
        for e in range(16):
            a(f"v_add_f32 v{8+e}, v{8+e}, v{8+16*sp+e}")
    for q in range(8):
        a(f"v_cvt_pk_bf16_f32 v{24+q}, v{8+2*q}, v{9+2*q}")
    a("v_lshrrev_b32 v2, 5, v0")
    a("v_lshlrev_b32 v2, 8, v2")
    a("v_and_b32 v3, 15, v0")
    a("v_lshl_add_u32 v2, v3, 4, v2")
    a("v_bfe_u32 v3, v0, 4, 1")
    a("v_lshl_add_u32 v2, v3, 3, v2")
    for q in range(4):
        a(f"ds_write_b64 v2, v[{24+2*q}:{25+2*q}] offset:{L_QS + 512*q}")
    lds_inc(a, L_QRDY)
    stamp(a, 2)
    if STRIP:
        a("s_endpgm")
    a(f"s_cmp_lt_u32 s2, {128 if F128 else 32}")
    a("s_cbranch_scc1 L_final")
    stamp_flush(a)
    a("s_endpgm")
    a.label("L_final")
    if F128:
        final128(a)
    else:
        final32(a)
    a("s_mov_b64 exec, -1")
    a("s_cmp_lg_u32 s2, 0")
    a("s_cbranch_scc1 L_end")
    a("s_mov_b64 exec, 1")
    a("v_mov_b32 v2, 0")
    a(f"v_mov_b32 v3, s{S_TAG}")
    a(f"buffer_store_dword v3, v2, {srd(SRD_WS)}, 0 offen sc1")
    if DBGT:
        a("s_memrealtime s[94:95]")
        a("s_waitcnt lgkmcnt(0)")
        a("s_sub_u32 s94, s94, s98")
        mk_srd(a, 84, 36, 256)
        a("v_mov_b32 v3, s94")
        a("buffer_store_dword v3, v2, s[84:87], 0 offen")
    a.label("L_end")
    a("s_endpgm")

    out += a.l
    out += ['.section .rodata,"a"', ".p2align 6", f".amdhsa_kernel {NAME}",
            "  .amdhsa_next_free_vgpr 168", "  .amdhsa_next_free_sgpr 100", "  .amdhsa_accum_offset 168",
            "  .amdhsa_group_segment_fixed_size 0", "  .amdhsa_kernarg_size 96", "  .amdhsa_user_sgpr_count 2",
            "  .amdhsa_user_sgpr_kernarg_segment_ptr 1", "  .amdhsa_system_sgpr_workgroup_id_x 1",
            ".end_amdhsa_kernel"]
    open(path, "w").write("\n".join(out) + "\n")

def wjob_consume_dyn(a):
    def rd(tb, T):
        for i in range(8):
            a(f"ds_read_b128 {vr(T+4*i)}, v3 offset:{(tb*8+i)*1024}")
    rd(0, W_T0)
    for tb in range(4):
        T = W_T0 if tb % 2 == 0 else W_T1
        if tb < 3:
            rd(tb+1, W_T1 if tb % 2 == 0 else W_T0)
            a("s_waitcnt lgkmcnt(8)")
        else:
            a("s_waitcnt lgkmcnt(0)")
        for w in range(4):
            TB = W_TB + 8*(w % 2)
            for p in range(4):
                a(f"v_perm_b32 v{TB+p}, v{T+4*(2*p+1)+w}, v{T+4*(2*p)+w}, s{S_SELLO}")
            for p in range(4):
                a(f"v_perm_b32 v{TB+4+p}, v{T+4*(2*p+1)+w}, v{T+4*(2*p)+w}, s{S_SELHI}")
            a("s_nop 1")
            for h in range(2):
                t = 2*w + h
                c = "0" if tb == 0 else vr(W_ACC+4*t)
                a(f"v_mfma_f32_16x16x32_bf16 {vr(W_ACC+4*t)}, {vr(W_AF+4*tb)}, {vr(TB+4*h)}, {c}")

if __name__ == "__main__":
    depth = int(sys.argv[2]) if len(sys.argv) > 2 else 8
    STAMPS = "stamps" in sys.argv
    for x in sys.argv[3:]:
        if "=" in x:
            k, v = x.split("=")
            globals()[k] = int(v) if v.lstrip('-').isdigit() else v.replace('_', ' ').strip()
    gen(sys.argv[1], depth)
```

```python
import struct, sys

NAME = "recurrent_scan__gqa_block_cached__glu_gated_geglu__decode_kernel"

def f32hex(x):
    return "0x%08x" % struct.unpack("<I", struct.pack("<f", x))[0]

EPOCH = 0
FQ = 0x1000
FGU = 0x2000
FO = 0x8000
FS = 0x3000
QP = 0x100000
GUP = 0x200000
OREC = 0x400000
SP = 0x800000

L_QRDY = 0
L_OCNT = 4
L_ISS = 8
L_QJ = 12
L_DNL = 40
L_OAF = 36
L_KISS = 24
L_GO = 16
L_REC = 20
L_ML = 0x100
L_QS = 0x400
L_AF = 0xC00
L_OP = 0x2000
L_WT = 0xA000
LDS_BYTES = 0xA000 + 3 * 0x8000

S_TAG = 40
S_TMO = 41
SRD_K, SRD_V, SRD_W, SRD_WS, SRD_X, SRD_OUT = 44, 48, 52, 56, 60, 64
S_SELLO, S_SELHI, S_SCALE, S_LOG2E = 68, 69, 70, 71

class A:
    def __init__(self):
        self.l = []
        self.n = 0
    def __call__(self, s):
        self.l.append("    " + s)
    def label(self, s):
        self.l.append(s + ":")
    def uniq(self, p):
        self.n += 1
        return f"L_{p}_{self.n}"

def vr(b, n=4):
    return f"v[{b}:{b+n-1}]"

def srd(b):
    return f"s[{b}:{b+3}]"

def mk_srd(a, d, ptr, nbytes):
    a(f"s_mov_b32 s{d}, s{ptr}")
    a(f"s_mov_b32 s{d+1}, s{ptr+1}")
    a(f"s_mov_b32 s{d+2}, {nbytes}")
    a(f"s_mov_b32 s{d+3}, 0x00020000")

def lds_wait(a, addr, n, vtmp=2, vz=3):
    lp = a.uniq("lw"); dn = a.uniq("lwd")
    a(f"s_mov_b32 s{S_TMO}, 400000")
    a(f"v_mov_b32 v{vz}, 0")
    a.label(lp)
    a(f"ds_read_b32 v{vtmp}, v{vz} offset:{addr}")
    a("s_waitcnt lgkmcnt(0)")
    a(f"v_readfirstlane_b32 s4, v{vtmp}")
    a("s_nop 3")
    a(f"s_cmp_ge_u32 s4, {n}")
    a(f"s_cbranch_scc1 {dn}")
    a(f"s_sleep {LSLEEP}")
    a(f"s_sub_u32 s{S_TMO}, s{S_TMO}, 1")
    a(f"s_cmp_lg_u32 s{S_TMO}, 0")
    a(f"s_cbranch_scc1 {lp}")
    a.label(dn)

L_MARK = 60
def mark_wait(a, vtmp=2, vz=3):
    lp = a.uniq("mw"); dn = a.uniq("mwd")
    a(f"s_mov_b32 s{S_TMO}, 400000")
    a(f"v_mov_b32 v{vz}, 0")
    a.label(lp)
    a(f"ds_read_b32 v{vtmp}, v{vz} offset:{L_MARK}")
    a("s_waitcnt lgkmcnt(0)")
    a(f"v_readfirstlane_b32 s4, v{vtmp}")
    a("s_nop 3")
    a(f"s_cmp_eq_u32 s4, s{S_TAG}")
    a(f"s_cbranch_scc1 {dn}")
    a("s_sleep 1")
    a(f"s_sub_u32 s{S_TMO}, s{S_TMO}, 1")
    a(f"s_cmp_lg_u32 s{S_TMO}, 0")
    a(f"s_cbranch_scc1 {lp}")
    a.label(dn)

def lds_inc(a, addr, v1=2, v2=3):
    a("s_mov_b64 exec, 1")
    a(f"v_mov_b32 v{v1}, 0")
    a(f"v_mov_b32 v{v2}, 1")
    a(f"ds_add_u32 v{v1}, v{v2} offset:{addr}")
    a("s_mov_b64 exec, -1")

def poll_flags(a, voff, soff_reg, vdst, width=1, tagreg_idx=0, execmask=None):
    lp = a.uniq("pl"); dn = a.uniq("pld")
    if NOSYNC:
        a("s_waitcnt vmcnt(0)")
        return
    a(f"s_mov_b32 s{S_TMO}, 100000")
    if execmask is not None:
        a(f"s_mov_b64 exec, {execmask}")
    a.label(lp)
    if width == 1:
        a(f"buffer_load_dword v{vdst}, v{voff}, {srd(SRD_WS)}, s{soff_reg} offen sc1")
    else:
        a(f"buffer_load_dwordx4 {vr(vdst)}, v{voff}, {srd(SRD_WS)}, s{soff_reg} offen sc1")
    a("s_waitcnt vmcnt(0)")
    a(f"v_cmp_ne_u32 vcc, s{S_TAG}, v{vdst+tagreg_idx}")
    a("s_nop 3")
    a("s_cmp_eq_u64 vcc, 0")
    a(f"s_cbranch_scc1 {dn}")
    a(f"s_sleep {PSLEEP}")
    a(f"s_sub_u32 s{S_TMO}, s{S_TMO}, 1")
    a(f"s_cmp_lg_u32 s{S_TMO}, 0")
    a(f"s_cbranch_scc1 {lp}")
    a.label(dn)
    if execmask is not None:
        a("s_mov_b64 exec, -1")

STAMPS = False
WPACE = 64
APRIO = 0
LSLEEP = 1
NOBAR = 0
T12 = 0
MASKG = 0
THR2 = 48
DN10 = 0
HTRIG = 0
TEARLY = 0
DBGT = 0
OFLAG = 0
OPAR = 0
OSLEEP = 2
GOREC = 8
F128 = 0
FDIRECT = 0
QTHR = 8
NOPOLL = 0
QTRIG = 16
RSLEEP = 8
STF = 'sc1'
NOFLAG = 0
NOGATH = 0
THR = 32
QWAIT = 0
VDEPTH = 4
VFROM = 16
STRIP = 0
TLATE = 0
L2G = 1
FBAR = 2
PRIO = 0
ABAR = 2
GATE_GU = 0
NOSYNC = 0
PSLEEP = 2
QPACE = 64
TPACE = 64
STAMP_BASE = 0xF00000
def stamp(a, idx):
    if not STAMPS: return
    a("s_memrealtime s[90:91]")
    a("s_waitcnt lgkmcnt(0)")
    a(f"s_mov_b32 s{72+idx}, s90")

def stamp_flush(a):
    if not STAMPS: return
    a("s_mov_b64 exec, 1")
    a("s_lshl_b32 s92, s2, 10")
    a("s_lshl_b32 s93, s3, 6")
    a("s_add_u32 s92, s92, s93")
    a(f"s_add_u32 s92, s92, {STAMP_BASE}")
    a("v_mov_b32 v1, 0")
    for q in range(4):
        for e in range(4):
            a(f"v_mov_b32 v{8+4*q+e}, s{72+4*q+e}")
        a(f"buffer_store_dwordx4 v[{8+4*q}:{11+4*q}], v1, {srd(SRD_WS)}, s92 offen offset:{16*q}")

S_MFF, S_PA, S_PB = 42, 43, 88
def tag_setup(a, vt):
    for i in range(4):
        a(f"v_mov_b32 v{vt+i}, s{S_TAG}")
        if i:
            a(f"v_lshrrev_b32 v{vt+i}, {8*i}, v{vt+i}")

S_MFFF = 89
def tag12_setup(a, vt):
    a(f"s_mul_i32 s4, s{S_TAG}, 0x9e3779b1")
    a("s_lshr_b32 s4, s4, 16")
    a(f"v_mov_b32 v{vt}, s{S_TAG}")
    a(f"v_lshrrev_b32 v{vt+1}, 12, v{vt}")
    a(f"s_lshr_b32 s5, s{S_TAG}, 24")
    a("s_lshl_b32 s6, s4, 8")
    a("s_or_b32 s5, s5, s6")
    a(f"v_mov_b32 v{vt+2}, s5")
    a("s_lshr_b32 s4, s4, 4")
    a(f"v_mov_b32 v{vt+3}, s4")

def tag12_check(a, R, vt, acc, t1, first=False):
    for i in range(4):
        a(f"v_xor_b32 v{t1}, v{R+i}, v{vt+i}")
        if first and i == 0:
            a(f"v_and_b32 v{acc}, s{S_MFFF}, v{t1}")
        else:
            a(f"v_and_or_b32 v{acc}, v{t1}, s{S_MFFF}, v{acc}")

def tag_apply(a, R, vt):
    for i in range(4):
        a(f"v_bfi_b32 v{R+i}, s{S_MFF}, v{vt+i}, v{R+i}")

def tag_check(a, R, acc, t1, t2, first=False):
    a(f"v_perm_b32 v{t1}, v{R+1}, v{R}, s{S_PA}")
    a(f"v_perm_b32 v{t2}, v{R+3}, v{R+2}, s{S_PB}")
    a(f"v_or_b32 v{t1}, v{t1}, v{t2}")
    if first:
        a(f"v_xor_b32 v{acc}, s{S_TAG}, v{t1}")
    else:
        a(f"v_xor_b32 v{t1}, s{S_TAG}, v{t1}")
        a(f"v_or_b32 v{acc}, v{acc}, v{t1}")

def gather(a, emit, acc):
    lp = a.uniq("gr"); dn = a.uniq("grd")
    emit("" if L2G else "sc1")
    if NOSYNC: return
    a(f"v_cmp_ne_u32 vcc, 0, v{acc}")
    a("s_nop 3")
    a("s_cmp_eq_u64 vcc, 0")
    a(f"s_cbranch_scc1 {dn}")
    a(f"s_mov_b32 s{S_TMO}, 100000")
    a.label(lp)
    emit("sc1")
    a(f"v_cmp_ne_u32 vcc, 0, v{acc}")
    a("s_nop 3")
    a("s_cmp_eq_u64 vcc, 0")
    a(f"s_cbranch_scc1 {dn}")
    a(f"s_sleep {RSLEEP}")
    a(f"s_sub_u32 s{S_TMO}, s{S_TMO}, 1")
    a(f"s_cmp_lg_u32 s{S_TMO}, 0")
    a(f"s_cbranch_scc1 {lp}")
    a.label(dn)

def gather_retry_begin(a):
    lp = a.uniq("gr")
    a(f"s_mov_b32 s{S_TMO}, 100000")
    a.label(lp)
    return lp

def gather_retry_end(a, lp, acc):
    dn = a.uniq("grd")
    if NOSYNC: return
    a(f"v_cmp_ne_u32 vcc, 0, v{acc}")
    a("s_nop 3")
    a("s_cmp_eq_u64 vcc, 0")
    a(f"s_cbranch_scc1 {dn}")
    a("s_sleep 1")
    a(f"s_sub_u32 s{S_TMO}, s{S_TMO}, 1")
    a(f"s_cmp_lg_u32 s{S_TMO}, 0")
    a(f"s_cbranch_scc1 {lp}")
    a.label(dn)

def rne(a, dst, src):
    a(f"v_cvt_pk_bf16_f32 v{dst}, v{src}, v{src}")
    a(f"v_lshlrev_b32 v{dst}, 16, v{dst}")

def row_reduce_add(a, v):
    for r in (8, 4, 2, 1):
        a("s_nop 1")
        a(f"v_add_f32_dpp v{v}, v{v}, v{v} row_ror:{r} row_mask:0xf bank_mask:0xf")

def row_reduce_max(a, v):
    for r in (8, 4, 2, 1):
        a("s_nop 1")
        a(f"v_max_f32_dpp v{v}, v{v}, v{v} row_ror:{r} row_mask:0xf bank_mask:0xf")

def xg_reduce(a, v, t, op):
    a(f"v_mov_b32 v{t}, v{v}")
    a("s_nop 1")
    a(f"v_permlane32_swap_b32 v{v}, v{t}")
    a("s_nop 1")
    a(f"{op} v{v}, v{v}, v{t}")
    a(f"v_mov_b32 v{t}, v{v}")
    a("s_nop 1")
    a(f"v_permlane16_swap_b32 v{v}, v{t}")
    a("s_nop 1")
    a(f"{op} v{v}, v{v}, v{t}")

W_T0, W_T1, W_ACC, W_TB, W_AF, W_M2 = 8, 40, 72, 104, 120, 136

def wjob_issue(a, rs, s_base, lds_slot, pace=64, barrier=False, dyn=None, mid=None, gate=None, bar_at=2):
    n = 0
    done = False
    for tb in range(4):
        for i in range(8):
            if barrier and n == bar_at:
                a("s_waitcnt lgkmcnt(0)")
                if not NOBAR: a("s_barrier")
                if gate: gate()
            if n == pace:
                if mid: mid()
                done = True
            if n >= pace:
                a(f"s_waitcnt vmcnt({pace-1})")
            a(f"s_add_u32 s5, s{s_base}, {(32*tb+i)*rs}")
            if dyn is None:
                a(f"s_mov_b32 m0, {lds_slot + (tb*8+i)*1024}")
            else:
                a(f"s_add_u32 s14, s{dyn}, {(tb*8+i)*1024}")
                a("s_mov_b32 m0, s14")
            a("s_nop 0")
            a(f"buffer_load_dwordx4 v1, {srd(SRD_W)}, s5 offen nt lds")
            n += 1
    if barrier and bar_at >= 32:
        a("s_waitcnt lgkmcnt(0)")
        if not NOBAR: a("s_barrier")
    if not done:
        if mid: mid()

def wjob_voff(a, rs):
    a("v_lshrrev_b32 v2, 4, v0")
    a(f"s_mov_b32 s5, {8*rs}")
    a("v_mul_lo_u32 v2, v2, s5")
    a("v_and_b32 v1, 15, v0")
    a("v_lshlrev_b32 v1, 4, v1")
    a("v_add_u32 v1, v1, v2")

def wjob_consume(a, lds_slot):
    a("v_lshlrev_b32 v2, 4, v0")
    def rd(tb, T):
        for i in range(8):
            off = lds_slot + (tb*8+i)*1024
            a(f"ds_read_b128 {vr(T+4*i)}, v3 offset:{(tb*8+i)*1024}")
    a(f"v_add_u32 v3, {lds_slot}, v2")
    rd(0, W_T0)
    for tb in range(4):
        T = W_T0 if tb % 2 == 0 else W_T1
        if tb < 3:
            rd(tb+1, W_T1 if tb % 2 == 0 else W_T0)
            a("s_waitcnt lgkmcnt(8)")
        else:
            a("s_waitcnt lgkmcnt(0)")
        for w in range(4):
            TB = W_TB + 8*(w % 2)
            for p in range(4):
                a(f"v_perm_b32 v{TB+p}, v{T+4*(2*p+1)+w}, v{T+4*(2*p)+w}, s{S_SELLO}")
            for p in range(4):
                a(f"v_perm_b32 v{TB+4+p}, v{T+4*(2*p+1)+w}, v{T+4*(2*p)+w}, s{S_SELHI}")
            a("s_nop 1")
            for h in range(2):
                t = 2*w + h
                c = "0" if tb == 0 else vr(W_ACC+4*t)
                a(f"v_mfma_f32_16x16x32_bf16 {vr(W_ACC+4*t)}, {vr(W_AF+4*tb)}, {vr(TB+4*h)}, {c}")

def wjob_store(a, s_out, mstride, s_flag, flag=True, t12=False):
    if t12:
        tag12_setup(a, W_M2)
    else:
        tag_setup(a, W_M2)
    a("s_nop 7")
    R = W_T0
    for m in range(4):
        for t in range(8):
            a(f"v_bfi_b32 v{R+8*m+t}, s{S_MFFF if t12 else S_MFF}, v{W_M2+(t&3)}, v{W_ACC+4*t+m}")
    a("v_lshlrev_b32 v2, 4, v0")
    a("s_mov_b64 exec, 0xffff")
    for m in range(4):
        a(f"s_add_u32 s5, s{s_out}, {m*mstride}")
        a(f"buffer_store_dwordx4 {vr(R+8*m)}, v2, {srd(SRD_WS)}, s5 offen {STF}")
        a(f"buffer_store_dwordx4 {vr(R+8*m+4)}, v2, {srd(SRD_WS)}, s5 offen offset:256 {STF}")
    a("s_mov_b64 exec, 1")
    a("v_mov_b32 v2, 0")
    if flag and not NOFLAG:
        a(f"buffer_store_dword v{W_M2}, v2, {srd(SRD_WS)}, s{s_flag} offen {STF}")
    a("s_mov_b64 exec, -1")

def ln_issue(a, s_r0x2):
    a("v_lshrrev_b32 v2, 4, v0")
    a("v_lshlrev_b32 v2, 11, v2")
    a("v_and_b32 v3, 15, v0")
    a("v_lshlrev_b32 v3, 7, v3")
    a("v_add_u32 v2, v2, v3")
    for k in range(8):
        a(f"buffer_load_dwordx4 {vr(W_T0+4*k)}, v2, {srd(SRD_X)}, 0 offen offset:{16*k}")
    a("v_and_b32 v3, 3, v0")
    a("v_lshlrev_b32 v3, 11, v3")
    a("v_lshrrev_b32 v4, 4, v0")
    a("v_lshlrev_b32 v4, 4, v4")
    a("v_add_u32 v3, v3, v4")
    for tb in range(4):
        a(f"buffer_load_dwordx4 {vr(W_AF+4*tb)}, v3, {srd(SRD_X)}, s{s_r0x2} offen offset:{64*tb}")

def ln_compute(a):
    X = W_T0
    a("v_mov_b32 v2, 0")
    a("v_mov_b32 v3, 0")
    for r in range(32):
        a(f"v_lshlrev_b32 v4, 16, v{X+r}")
        a(f"v_and_b32 v5, 0xffff0000, v{X+r}")
        a("v_add_f32 v2, v2, v4")
        a("v_add_f32 v3, v3, v5")
    a("v_add_f32 v2, v2, v3")
    row_reduce_add(a, 2)
    a(f"v_mul_f32 v2, {f32hex(1.0/1024)}, v2")
    a("v_mov_b32 v3, 0")
    a("v_mov_b32 v6, 0")
    for r in range(32):
        a(f"v_lshlrev_b32 v4, 16, v{X+r}")
        a(f"v_and_b32 v5, 0xffff0000, v{X+r}")
        a("v_sub_f32 v4, v4, v2")
        a("v_sub_f32 v5, v5, v2")
        a("v_fmac_f32 v3, v4, v4")
        a("v_fmac_f32 v6, v5, v5")
    a("v_add_f32 v3, v3, v6")
    row_reduce_add(a, 3)
    a(f"v_mul_f32 v3, {f32hex(1.0/1024)}, v3")
    rne(a, 2, 2)
    rne(a, 3, 3)
    a(f"v_add_f32 v3, {f32hex(1e-5)}, v3")
    rne(a, 3, 3)
    a("v_sqrt_f32 v3, v3")
    a("s_nop 0")
    rne(a, 3, 3)
    a("v_and_b32 v4, 3, v0")
    a("v_lshlrev_b32 v4, 6, v4")
    a("ds_bpermute_b32 v2, v4, v2")
    a("ds_bpermute_b32 v3, v4, v3")
    a("s_waitcnt lgkmcnt(0)")
    a("v_rcp_f32 v4, v3")
    a("s_nop 0")
    for r in range(16):
        R = W_AF + r
        a(f"v_lshlrev_b32 v5, 16, v{R}")
        a(f"v_and_b32 v6, 0xffff0000, v{R}")
        a("v_sub_f32 v5, v5, v2")
        a("v_sub_f32 v6, v6, v2")
        a("v_cvt_pk_bf16_f32 v7, v5, v6")
        a("v_lshlrev_b32 v5, 16, v7")
        a("v_and_b32 v6, 0xffff0000, v7")
        a(f"v_mul_f32 v{W_M2}, v5, v4")
        a(f"v_mul_f32 v{W_M2+1}, v6, v4")
        a(f"v_fma_f32 v5, -v{W_M2}, v3, v5")
        a(f"v_fma_f32 v6, -v{W_M2+1}, v3, v6")
        a(f"v_fma_f32 v{W_M2}, v5, v4, v{W_M2}")
        a(f"v_fma_f32 v{W_M2+1}, v6, v4, v{W_M2+1}")
        a(f"v_cvt_pk_bf16_f32 v{R}, v{W_M2}, v{W_M2+1}")

def af_via_lds(a, vpk, lds_af):
    a("v_lshlrev_b32 v2, 4, v0")
    a(f"ds_write_b128 v2, {vr(vpk)} offset:{lds_af}")
    a("v_and_b32 v2, 3, v0")
    a("v_lshlrev_b32 v2, 8, v2")
    a("v_lshrrev_b32 v3, 4, v0")
    a("v_lshlrev_b32 v3, 4, v3")
    a("v_add_u32 v2, v2, v3")
    a("s_waitcnt lgkmcnt(0)")
    for tb in range(4):
        a(f"ds_read_b128 {vr(W_AF+4*tb)}, v2 offset:{lds_af + 64*tb}")
    a("s_waitcnt lgkmcnt(0)")

def final32(a):
    a("s_and_b32 s8, s2, 7")
    a("s_lshr_b32 s9, s2, 3")
    a("s_lshl_b32 s12, s8, 8")
    a(f"s_add_u32 s12, s12, {FS}")
    a("v_lshlrev_b32 v6, 2, v0")
    if FDIRECT:
        lds_wait(a, L_REC, 8)
    else:
        a("s_mov_b32 s10, -1")
        a("s_mov_b32 s11, 0x0fffffff")
        poll_flags(a, 6, 12, 7, execmask="s[10:11]")
    stamp(a, 3)
    a("v_and_b32 v3, 31, v0")
    a("v_and_b32 v4, 15, v0")
    a("v_lshlrev_b32 v4, 4, v4")
    a("v_bfe_u32 v5, v0, 4, 1")
    a("v_lshl_add_u32 v4, v5, 3, v4")
    a("s_lshl_b32 s13, s9, 11")
    a("s_lshl_b32 s14, s8, 8")
    a("s_add_u32 s13, s13, s14")
    a(f"buffer_load_dwordx2 v[140:141], v4, {srd(SRD_X)}, s13 offen")
    a("v_lshrrev_b32 v2, 5, v0")
    a("v_lshlrev_b32 v2, 16, v2")
    a("v_lshl_add_u32 v2, v3, 4, v2")
    a("s_lshl_b32 s12, s8, 17")
    a("s_lshl_b32 s14, s9, 9")
    a("s_add_u32 s12, s12, s14")
    a(f"s_add_u32 s12, s12, {SP}")
    tag_setup(a, 144)
    def emit(fl):
        for j in range(28, 32):
            for e in range(4):
                a(f"v_and_b32 v{8+4*j+e}, 0xff, v{144+e}")
        for j in range(32):
            if j == 28:
                a("s_mov_b32 exec_lo, -1"); a("s_mov_b32 exec_hi, 0")
            a(f"s_add_u32 s5, s12, {j*2048}")
            a(f"buffer_load_dwordx4 {vr(8+4*j)}, v2, {srd(SRD_WS)}, s5 offen {fl}")
        a("s_mov_b64 exec, -1")
        for q in range(32):
            a(f"s_waitcnt vmcnt({31-q})")
            tag_check(a, 8+4*q, 136, 137, 138, first=(q == 0))
    gather(a, emit, 136)
    for j in range(1, 32):
        for e in range(4):
            a(f"v_add_f32 v{8+e}, v{8+e}, v{8+4*j+e}")
    for e in range(4):
        a(f"v_mov_b32 v{12+e}, v{8+e}")
    a("s_nop 1")
    for e in range(4):
        a(f"v_permlane32_swap_b32 v{8+e}, v{12+e}")
    a("s_nop 1")
    a(f"s_mov_b32 s14, {f32hex(-1.4426950408889634)}")
    for e in range(4):
        s_, f_, t = 8+e, 12+e, 16+e
        rne(a, s_, s_)
        rne(a, f_, f_)
        a(f"v_mul_f32 v{t}, s14, v{f_}")
        a(f"v_exp_f32 v{t}, v{t}")
        a("s_nop 0")
        a(f"v_add_f32 v{t}, 1.0, v{t}")
        a(f"v_rcp_f32 v{t}, v{t}")
        a("s_nop 0")
        a(f"v_mul_f32 v{t}, v{t}, v{f_}")
        rne(a, t, t)
        a(f"v_mul_f32 v{t}, v{t}, v{s_}")
        rne(a, t, t)
        xr = 140 + e // 2
        if e % 2 == 0:
            a(f"v_lshlrev_b32 v{s_}, 16, v{xr}")
        else:
            a(f"v_and_b32 v{s_}, 0xffff0000, v{xr}")
        a(f"v_add_f32 v{t}, v{t}, v{s_}")
    a("v_cvt_pk_bf16_f32 v20, v16, v17")
    a("v_cvt_pk_bf16_f32 v21, v18, v19")
    a("s_mov_b32 exec_lo, -1"); a("s_mov_b32 exec_hi, 0")
    a(f"buffer_store_dwordx2 v[20:21], v4, {srd(SRD_OUT)}, s13 offen")
    stamp(a, 4)
    stamp_flush(a)

def final128(a):
    a("s_and_b32 s8, s2, 7")
    a("s_lshr_b32 s9, s2, 3")
    a("s_and_b32 s9, s9, 3")
    a("s_lshr_b32 s10, s2, 5")
    lds_wait(a, L_REC, 8)
    stamp(a, 3)
    a("v_and_b32 v3, 7, v0")
    a("s_lshl_b32 s11, s10, 3")
    a("v_add_u32 v3, s11, v3")
    a("v_and_b32 v4, 15, v3")
    a("v_lshlrev_b32 v4, 4, v4")
    a("v_lshrrev_b32 v5, 4, v3")
    a("v_lshl_add_u32 v4, v5, 3, v4")
    a("s_lshl_b32 s13, s9, 11")
    a("s_lshl_b32 s14, s8, 8")
    a("s_add_u32 s13, s13, s14")
    a(f"buffer_load_dwordx2 v[140:141], v4, {srd(SRD_X)}, s13 offen")
    a("v_lshrrev_b32 v2, 3, v0")
    a("v_lshlrev_b32 v2, 11, v2")
    a("v_lshl_add_u32 v2, v3, 4, v2")
    a("s_lshl_b32 s12, s8, 17")
    a("s_lshl_b32 s14, s9, 9")
    a("s_add_u32 s12, s12, s14")
    a(f"s_add_u32 s12, s12, {SP}")
    if T12:
        tag12_setup(a, 144)
    else:
        tag_setup(a, 144)
    def emit(fl):
        for e in range(4):
            a(f"v_and_b32 v{8+28+e}, {'0xfff' if T12 else '0xff'}, v{144+e}")
        for i in range(8):
            if i == 7:
                a("s_mov_b32 exec_lo, -1"); a("s_mov_b32 exec_hi, 0")
            a(f"s_add_u32 s5, s12, {i*8*2048}")
            a(f"buffer_load_dwordx4 {vr(8+4*i)}, v2, {srd(SRD_WS)}, s5 offen {fl}")
        a("s_mov_b64 exec, -1")
        for q in range(8):
            a(f"s_waitcnt vmcnt({7-q})")
            if T12:
                tag12_check(a, 8+4*q, 144, 136, 137, first=(q == 0))
            else:
                tag_check(a, 8+4*q, 136, 137, 138, first=(q == 0))
    gather(a, emit, 136)
    for e in range(4):
        a(f"v_add_f32 v{8+e}, v{8+e}, v{12+e}")
        a(f"v_add_f32 v{16+e}, v{16+e}, v{20+e}")
        a(f"v_add_f32 v{24+e}, v{24+e}, v{28+e}")
        a(f"v_add_f32 v{32+e}, v{32+e}, v{36+e}")
    for e in range(4):
        a(f"v_add_f32 v{8+e}, v{8+e}, v{16+e}")
        a(f"v_add_f32 v{12+e}, v{24+e}, v{32+e}")
    a("s_nop 1")
    for e in range(8):
        a(f"v_add_f32_dpp v{8+e}, v{8+e}, v{8+e} row_ror:8 row_mask:0xf bank_mask:0xf")
    for e in range(8):
        a(f"v_mov_b32 v{40+e}, v{8+e}")
    a("s_nop 1")
    for e in range(8):
        a(f"v_permlane32_swap_b32 v{8+e}, v{40+e}")
    a("s_nop 1")
    for e in range(8):
        a(f"v_add_f32 v{8+e}, v{8+e}, v{40+e}")
    for e in range(8):
        a(f"v_mov_b32 v{40+e}, v{8+e}")
    a("s_nop 1")
    for e in range(8):
        a(f"v_permlane16_swap_b32 v{8+e}, v{40+e}")
    a("s_nop 1")
    for e in range(8):
        a(f"v_add_f32 v{8+e}, v{8+e}, v{40+e}")
    a(f"s_mov_b32 s14, {f32hex(-1.4426950408889634)}")
    for e in range(4):
        s_, f_, t = 8+e, 12+e, 16+e
        rne(a, s_, s_)
        rne(a, f_, f_)
        a(f"v_mul_f32 v{t}, s14, v{f_}")
        a(f"v_exp_f32 v{t}, v{t}")
        a("s_nop 0")
        a(f"v_add_f32 v{t}, 1.0, v{t}")
        a(f"v_rcp_f32 v{t}, v{t}")
        a("s_nop 0")
        a(f"v_mul_f32 v{t}, v{t}, v{f_}")
        rne(a, t, t)
        a(f"v_mul_f32 v{t}, v{t}, v{s_}")
        rne(a, t, t)
        xr = 140 + e // 2
        if e % 2 == 0:
            a(f"v_lshlrev_b32 v{s_}, 16, v{xr}")
        else:
            a(f"v_and_b32 v{s_}, 0xffff0000, v{xr}")
        a(f"v_add_f32 v{t}, v{t}, v{s_}")
    a("v_cvt_pk_bf16_f32 v20, v16, v17")
    a("v_cvt_pk_bf16_f32 v21, v18, v19")
    a("s_mov_b64 exec, 0xff")
    a(f"buffer_store_dwordx2 v[20:21], v4, {srd(SRD_OUT)}, s13 offen")
    stamp(a, 4)
    stamp_flush(a)

def gen(path, depth=8):
    a = A()
    hdr = open("recurrent_scan__gqa_block_cached__glu_gated_geglu__decode.s.ref").read().split("\n")
    top = [l for l in hdr if l.startswith(";") and "@launch" not in l]
    out = top + [f"; @launch grid=(256,1,1) block=(768,1,1) lds={LDS_BYTES}"]
    out += ['.amdgcn_target "amdgcn-amd-amdhsa--gfx950"', ".text", f".globl {NAME}", ".p2align 8",
            f".type {NAME},@function", f"{NAME}:"]
    a("s_cmp_ge_u32 s2, 256")
    a("s_cbranch_scc1 L_end")
    a("s_load_dwordx16 s[16:31], s[0:1], 0")
    a("s_load_dwordx8 s[32:39], s[0:1], 64")
    a("v_lshrrev_b32 v1, 6, v0")
    a("v_and_b32 v0, 63, v0")
    a("s_nop 0")
    a("v_readfirstlane_b32 s3, v1")
    a("s_and_b32 s4, s2, 7")
    a("s_lshr_b32 s5, s2, 3")
    a("s_lshl_b32 s96, s4, 5")
    a("s_add_u32 s96, s96, s5")
    a("s_mul_i32 s97, s4, 28")
    a("s_add_u32 s97, s97, s5")
    a(f"s_mov_b32 s{S_SELLO}, 0x05040100")
    a(f"s_mov_b32 s{S_SELHI}, 0x07060302")
    a(f"s_mov_b32 s{S_SCALE}, {f32hex(128 ** -0.5)}")
    a(f"s_mov_b32 s{S_LOG2E}, {f32hex(1.4426950408889634)}")
    a(f"s_mov_b32 s{S_MFF}, 0xff")
    a(f"s_mov_b32 s{S_MFFF}, 0xfff")
    a(f"s_mov_b32 s{S_PA}, 0x0c0c0400")
    a(f"s_mov_b32 s{S_PB}, 0x04000c0c")
    a("s_waitcnt lgkmcnt(0)")
    a(f"s_load_dword s{S_TAG}, s[38:39], {EPOCH}")
    mk_srd(a, SRD_K, 18, 0x2000000)
    mk_srd(a, SRD_V, 20, 0x2000000)
    mk_srd(a, SRD_WS, 38, 0x10000000)
    mk_srd(a, SRD_X, 16, 8192)
    mk_srd(a, SRD_OUT, 34, 8192)
    if STAMPS:
        for i in range(16): a(f"s_mov_b32 s{72+i}, 0")
    stamp(a, 0)
    a("s_cmp_ge_u32 s3, 8")
    a("s_cbranch_scc1 L_notattn")

    K0, V0, Q0, S0 = 8, 72, 136, 152
    a("s_lshl_b32 s6, s96, 17")
    a("s_lshl_b32 s5, s3, 14")
    a("s_add_u32 s6, s6, s5")
    a("v_and_b32 v2, 15, v0")
    a("v_lshrrev_b32 v3, 4, v0")
    a("v_lshlrev_b32 v4, 8, v2")
    a("v_lshl_add_u32 v4, v3, 4, v4")
    a("v_lshlrev_b32 v5, 10, v3")
    a("v_lshl_add_u32 v5, v2, 4, v5")
    loads = []
    for kt in range(4):
        for c in range(4):
            loads.append((SRD_K, 4, K0+16*kt+4*c, kt*4096, c*64))
    for u in range(2):
        for i in range(8):
            loads.append((SRD_V, 5, V0+32*u+4*i, u*8192+(i >> 2)*4096, (i & 3)*256))
    for n, (sr, vo, dst, so, io) in enumerate(loads):
        if n == ABAR and not NOBAR:
            a("s_waitcnt lgkmcnt(0)")
            a("s_barrier")
        dd = depth if n < VFROM else VDEPTH
        if n >= dd:
            a(f"s_waitcnt vmcnt({dd-1})")
        a(f"s_add_u32 s7, s6, {so}")
        a(f"buffer_load_dwordx4 {vr(dst)}, v{vo}, {srd(sr)}, s7 offen offset:{io} nt")
        if NOPOLL and n == QTRIG:
            if NOBAR:
                a("s_waitcnt lgkmcnt(0)")
                a(f"s_add_u32 s{S_TAG}, s{S_TAG}, 1")
                mark_wait(a)
            lds_inc(a, L_KISS)
    if not NOBAR:
        a(f"s_add_u32 s{S_TAG}, s{S_TAG}, 1")
    stamp(a, 1)
    if STRIP:
        a("s_waitcnt vmcnt(0)")
        stamp(a, 5)
        stamp_flush(a)
        a("s_endpgm")
    lds_inc(a, L_ISS)
    if APRIO:
        a("s_setprio 3")
    lds_wait(a, L_QRDY, 1)
    stamp(a, 2)
    a("v_and_b32 v2, 7, v0")
    a("v_lshlrev_b32 v2, 8, v2")
    a("v_lshrrev_b32 v3, 4, v0")
    a("v_lshl_add_u32 v2, v3, 4, v2")
    for c in range(4):
        a(f"ds_read_b128 {vr(Q0+4*c)}, v2 offset:{L_QS + 64*c}")
    a("s_waitcnt vmcnt(16) lgkmcnt(0)")
    stamp(a, 3)
    for kt in range(4):
        for c in range(4):
            cc = "0" if c == 0 else vr(S0+4*kt)
            a(f"v_mfma_f32_16x16x32_bf16 {vr(S0+4*kt)}, {vr(K0+16*kt+4*c)}, {vr(Q0+4*c)}, {cc}")
    a("s_nop 7")
    a("s_nop 1")
    for p in range(8):
        x, y = S0+2*p, S0+2*p+1
        a(f"v_cvt_pk_bf16_f32 v2, v{x}, v{y}")
        a(f"v_lshlrev_b32 v{x}, 16, v2")
        a(f"v_and_b32 v{y}, 0xffff0000, v2")
        a(f"v_mul_f32 v{x}, s{S_SCALE}, v{x}")
        a(f"v_mul_f32 v{y}, s{S_SCALE}, v{y}")
        a(f"v_cvt_pk_bf16_f32 v2, v{x}, v{y}")
        a(f"v_lshlrev_b32 v{x}, 16, v2")
        a(f"v_and_b32 v{y}, 0xffff0000, v2")
    a(f"v_max3_f32 v6, v{S0}, v{S0+1}, v{S0+2}")
    for i in range(3, 15, 2):
        a(f"v_max3_f32 v6, v6, v{S0+i}, v{S0+i+1}")
    a(f"v_max_f32 v6, v6, v{S0+15}")
    xg_reduce(a, 6, 7, "v_max_f32")
    a(f"v_mul_f32 v6, s{S_LOG2E}, v6")
    for i in range(16):
        a(f"v_fma_f32 v{S0+i}, v{S0+i}, s{S_LOG2E}, -v6")
    for i in range(16):
        a(f"v_exp_f32 v{S0+i}, v{S0+i}")
    a("s_nop 0")
    a(f"v_add_f32 v7, v{S0}, v{S0+1}")
    for i in range(2, 16):
        a(f"v_add_f32 v7, v7, v{S0+i}")
    xg_reduce(a, 7, 2, "v_add_f32")
    P0 = 56
    for u in range(2):
        for q in range(4):
            a(f"v_cvt_pk_bf16_f32 v{P0+4*u+q}, v{S0+8*u+2*q}, v{S0+8*u+2*q+1}")
    stamp(a, 4)
    O0, TB0 = 8, 40
    for u in range(2):
        a(f"s_waitcnt vmcnt({8 if u == 0 else 0})")
        for w in range(4):
            TB = TB0 + 8*(w % 2)
            for p in range(4):
                a(f"v_perm_b32 v{TB+p}, v{V0+32*u+4*(2*p+1)+w}, v{V0+32*u+4*(2*p)+w}, s{S_SELLO}")
            for p in range(4):
                a(f"v_perm_b32 v{TB+4+p}, v{V0+32*u+4*(2*p+1)+w}, v{V0+32*u+4*(2*p)+w}, s{S_SELHI}")
            a("s_nop 1")
            for h in range(2):
                t = 2*w+h
                cc = "0" if u == 0 else vr(O0+4*t)
                a(f"v_mfma_f32_16x16x32_bf16 {vr(O0+4*t)}, {vr(P0+4*u)}, {vr(TB+4*h)}, {cc}")
    a("s_nop 7")
    a("s_nop 1")
    R0 = 72
    for r in range(4):
        for t in range(8):
            a(f"v_mov_b32 v{R0+8*r+t}, v{O0+4*t+r}")
    a("v_lshrrev_b32 v2, 4, v0")
    a("v_lshlrev_b32 v2, 11, v2")
    a("v_and_b32 v3, 15, v0")
    a("v_lshl_add_u32 v2, v3, 5, v2")
    a("s_lshl_b32 s5, s3, 12")
    a("v_add_u32 v2, s5, v2")
    a("s_mov_b32 exec_lo, -1"); a("s_mov_b32 exec_hi, 0")
    for r in range(4):
        a(f"ds_write_b128 v2, {vr(R0+8*r)} offset:{L_OP + r*512}")
        a(f"ds_write_b128 v2, {vr(R0+8*r+4)} offset:{L_OP + r*512 + 16}")
    a("s_mov_b64 exec, -1")
    a("v_and_b32 v2, 7, v0")
    a("v_lshlrev_b32 v2, 3, v2")
    a("s_lshl_b32 s5, s3, 6")
    a("v_add_u32 v2, s5, v2")
    a(f"ds_write_b64 v2, v[6:7] offset:{L_ML}")
    stamp(a, 5)
    lds_inc(a, L_OCNT)
    lds_wait(a, L_OCNT, 8)
    stamp(a, 6)
    a("s_lshl_b32 s5, s3, 3")
    a("v_mov_b32 v2, s5")
    for w in range(8):
        a(f"ds_read_b64 v[{8+2*w}:{9+2*w}], v2 offset:{L_ML + w*64}")
    a("s_lshl_b32 s5, s3, 9")
    a("v_and_b32 v3, 31, v0")
    a("v_lshlrev_b32 v3, 4, v3")
    a("v_add_u32 v3, s5, v3")
    for w in range(8):
        a(f"ds_read_b128 {vr(24+4*w)}, v3 offset:{L_OP + w*4096}")
    tag_setup(a, 64)
    a("s_waitcnt lgkmcnt(8)")
    a("v_max3_f32 v4, v8, v10, v12")
    a("v_max3_f32 v4, v4, v14, v16")
    a("v_max3_f32 v4, v4, v18, v20")
    a("v_max_f32 v4, v4, v22")
    for w in range(8):
        a(f"v_sub_f32 v{8+2*w}, v{8+2*w}, v4")
    for w in range(8):
        a(f"v_exp_f32 v{8+2*w}, v{8+2*w}")
    a("s_waitcnt lgkmcnt(0)")
    a("v_mul_f32 v5, v8, v9")
    for e in range(4):
        a(f"v_mul_f32 v{60+e}, v8, v{24+e}")
    for w in range(1, 8):
        a(f"v_fmac_f32 v5, v{8+2*w}, v{9+2*w}")
        for e in range(4):
            a(f"v_fmac_f32 v{60+e}, v{8+2*w}, v{24+4*w+e}")
    tag_apply(a, 60, 64)
    a("s_lshr_b32 s5, s96, 4")
    a("s_and_b32 s5, s5, 3")
    a("s_lshl_b32 s5, s5, 3")
    a("s_add_u32 s5, s5, s3")
    a("s_lshl_b32 s5, s5, 2")
    a("s_lshr_b32 s6, s96, 6")
    a("s_add_u32 s5, s5, s6")
    a("s_lshl_b32 s5, s5, 4")
    a("s_and_b32 s6, s96, 15")
    a("s_add_u32 s5, s5, s6")
    a("s_lshl_b32 s5, s5, 10")
    a(f"s_add_u32 s5, s5, {OREC}")
    a("v_lshlrev_b32 v3, 4, v0")
    a(f"v_mov_b32 v6, s{S_TAG}")
    a(f"v_mov_b32 v7, s{S_TAG}")
    a("s_mov_b32 exec_lo, -1"); a("s_mov_b32 exec_hi, 0")
    a(f"buffer_store_dwordx4 v[60:63], v3, {srd(SRD_WS)}, s5 offen sc1")
    a("s_mov_b64 exec, 1")
    a(f"buffer_store_dwordx4 v[4:7], v3, {srd(SRD_WS)}, s5 offen offset:512 sc1")
    if OFLAG:
        a(f"s_sub_u32 s6, s5, {OREC}")
        a("s_lshr_b32 s6, s6, 8")
        a(f"s_add_u32 s6, s6, {FO}")
        a(f"buffer_store_dword v6, v3, {srd(SRD_WS)}, s6 offen sc1")
    a("s_mov_b64 exec, -1")
    lds_inc(a, L_REC)
    if OPAR:
        stamp(a, 7)
        a("s_lshr_b32 s12, s96, 3")
        a("s_lshl_b32 s12, s12, 16")
        a(f"s_add_u32 s12, s12, {OREC}")
        a("s_lshl_b32 s13, s3, 6")
        a("s_add_u32 s13, s13, s12")
        a("v_lshlrev_b32 v6, 10, v0")
        def body(fl):
            a(f"buffer_load_dwordx4 v[8:11], v6, {srd(SRD_WS)}, s12 offen offset:512 {fl}")
            for q in range(4):
                a(f"buffer_load_dwordx4 {vr(12+4*q)}, v6, {srd(SRD_WS)}, s13 offen offset:{16*q} {fl}")
            a("s_mov_b64 exec, -1")
            a("s_waitcnt vmcnt(0)")
            a(f"v_xor_b32 v30, s{S_TAG}, v10")
            for q in range(4):
                tag_check(a, 12+4*q, 30, 31, 32)
            a("v_cmp_ne_u32 vcc, 0, v30")
            a("s_nop 3")
            a("s_cmp_eq_u64 vcc, 0")
        lp = a.uniq("og"); dn = a.uniq("ogd")
        body("")
        if not NOSYNC:
            a(f"s_cbranch_scc1 {dn}")
            a(f"s_mov_b32 s{S_TMO}, 100000")
            a.label(lp)
            a(f"s_sleep {OSLEEP}")
            a("s_mov_b64 exec, vcc")
            body("sc1")
            a(f"s_cbranch_scc1 {dn}")
            a(f"s_sub_u32 s{S_TMO}, s{S_TMO}, 1")
            a(f"s_cmp_lg_u32 s{S_TMO}, 0")
            a(f"s_cbranch_scc1 {lp}")
            a.label(dn)
        stamp(a, 8)
        a("v_mov_b32 v30, v8")
        row_reduce_max(a, 30)
        a("v_sub_f32 v8, v8, v30")
        a("v_exp_f32 v8, v8")
        a("s_nop 0")
        a("v_mul_f32 v9, v8, v9")
        row_reduce_add(a, 9)
        a("v_rcp_f32 v9, v9")
        a("s_nop 0")
        a("v_mul_f32 v8, v8, v9")
        for e in range(16):
            a(f"v_mul_f32 v{12+e}, v{12+e}, v8")
        for r in (8, 4, 2, 1):
            for e in range(16):
                a(f"v_add_f32_dpp v{12+e}, v{12+e}, v{12+e} row_ror:{r} row_mask:0xf bank_mask:0xf")
        for q in range(8):
            a(f"v_cvt_pk_bf16_f32 v{32+q}, v{12+2*q}, v{13+2*q}")
        a("v_lshrrev_b32 v2, 4, v0")
        a("v_lshlrev_b32 v2, 8, v2")
        a("s_lshl_b32 s5, s3, 5")
        a("v_add_u32 v2, s5, v2")
        a("s_mov_b32 exec_lo, 0x00010001")
        a("s_mov_b32 exec_hi, 0x00010001")
        a(f"ds_write_b128 v2, v[32:35] offset:{L_AF}")
        a(f"ds_write_b128 v2, v[36:39] offset:{L_AF+16}")
        a("s_mov_b64 exec, -1")
        lds_inc(a, L_OAF)
        stamp(a, 9)
        stamp_flush(a)
        a("s_endpgm")
    stamp(a, 7)
    stamp_flush(a)
    a("s_endpgm")

    a.label("L_notattn")
    if PRIO:
        a("s_setprio 3")
    a("s_cmp_eq_u32 s3, 11")
    a("s_cbranch_scc1 L_comm")
    a("s_cmp_eq_u32 s3, 8")
    a("s_cbranch_scc1 L_w8")
    a("s_cmp_lt_u32 s2, 224")
    a("s_cbranch_scc1 L_ffn")
    a("s_waitcnt lgkmcnt(0)")
    if not NOBAR: a("s_barrier")
    a("s_endpgm")
    a.label("L_ffn")
    a("s_cmp_eq_u32 s3, 9")
    a("s_cselect_b32 s52, s28, s30")
    a("s_cselect_b32 s53, s29, s31")
    a(f"s_mov_b32 s54, {1024*3584*2}")
    a("s_mov_b32 s55, 0x00020000")
    a("s_lshr_b32 s8, s2, 3")
    a("s_and_b32 s9, s2, 7")
    a("s_lshl_b32 s10, s9, 8")
    ln_issue(a, 10)
    wjob_voff(a, 7168)
    a(f"s_mul_i32 s11, s9, {128*7168}")
    a("s_lshl_b32 s12, s8, 8")
    a("s_add_u32 s11, s11, s12")
    a("s_sub_u32 s13, s3, 8")
    a("s_lshl_b32 s13, s13, 15")
    a(f"s_add_u32 s13, s13, {L_WT}")
    def mid_ffn():
        a(f"s_add_u32 s{S_TAG}, s{S_TAG}, 1")
        a(f"s_waitcnt vmcnt({min(WPACE,32)})")
        stamp(a, 1)
        a("v_mov_b32 v160, v1")
        ln_compute(a)
        a("v_mov_b32 v1, v160")
        stamp(a, 2)
    def gate_ffn():
        if GATE_GU:
            lds_wait(a, L_QJ, 1)
    wjob_issue(a, 7168, 11, None, pace=WPACE, barrier=True, dyn=13, mid=mid_ffn, gate=gate_ffn, bar_at=FBAR)
    a("s_waitcnt vmcnt(0)")
    if STRIP == 1:
        a("s_endpgm")
    a("v_lshlrev_b32 v2, 4, v0")
    a("v_add_u32 v3, s13, v2")
    stamp(a, 3)
    wjob_consume_dyn(a)
    a("s_sub_u32 s12, s3, 9")
    a("s_mul_i32 s14, s12, 458752")
    a("s_mul_i32 s15, s9, 57344")
    a("s_add_u32 s14, s14, s15")
    a("s_lshl_b32 s15, s8, 9")
    a("s_add_u32 s14, s14, s15")
    a(f"s_add_u32 s14, s14, {GUP}")
    a("s_lshl_b32 s15, s8, 4")
    a("s_lshl_b32 s12, s12, 3")
    a("s_add_u32 s15, s15, s12")
    a("s_add_u32 s15, s15, s9")
    a("s_lshl_b32 s15, s15, 2")
    a(f"s_add_u32 s15, s15, {FGU}")
    wjob_store(a, 14, 14336, 15, flag=not NOPOLL)
    if NOBAR: mark_wait(a)
    stamp(a, 4)
    if STRIP:
        a("s_endpgm")
    a("s_cmp_eq_u32 s3, 9")
    a("s_cbranch_scc1 L_down")
    stamp_flush(a)
    if DN10:
        a("s_mov_b64 exec, -1")
        a("s_lshr_b32 s8, s97, 3")
        a("s_and_b32 s9, s97, 7")
        mk_srd(a, SRD_W, 32, 3584*1024*2)
        wjob_voff(a, 2048)
        a(f"s_mul_i32 s11, s8, {128*2048}")
        a("s_lshl_b32 s12, s9, 8")
        a("s_add_u32 s11, s11, s12")
        lds_wait(a, L_GO, 1)
        wjob_issue(a, 2048, 11, L_WT + 0x10000, pace=TPACE)
        a("s_waitcnt vmcnt(0)")
        lds_inc(a, L_DNL)
    a("s_endpgm")

    a.label("L_down")
    a("s_lshr_b32 s8, s97, 3")
    a("s_and_b32 s9, s97, 7")
    mk_srd(a, SRD_W, 32, 3584*1024*2)
    a("s_lshl_b32 s12, s8, 6")
    a(f"s_add_u32 s12, s12, {FGU}")
    a("v_lshlrev_b32 v6, 2, v0")
    if NOPOLL:
        if HTRIG:
            lds_wait(a, L_QRDY, 1)
        else:
            lds_wait(a, L_ISS, 8)
    else:
        poll_flags(a, 6, 12, 7, execmask="0xffff")
    stamp(a, 5)
    a("v_lshrrev_b32 v2, 4, v0")
    a("v_mul_u32_u24 v2, 14336, v2")
    a("v_and_b32 v3, 15, v0")
    a("v_lshl_add_u32 v2, v3, 4, v2")
    a("s_lshl_b32 s12, s8, 9")
    a(f"s_add_u32 s12, s12, {GUP}")
    G = 8
    def emit(fl):
        for mat in range(2):
            for sp in range(8):
                a(f"s_add_u32 s5, s12, {mat*458752 + sp*57344}")
                a(f"buffer_load_dwordx4 {vr(G+64*mat+8*sp)}, v2, {srd(SRD_WS)}, s5 offen {fl}")
                a(f"buffer_load_dwordx4 {vr(G+64*mat+8*sp+4)}, v2, {srd(SRD_WS)}, s5 offen offset:256 {fl}")
        for q in range(32):
            a(f"s_waitcnt vmcnt({31-q})")
            tag_check(a, G+4*q, 136, 137, 138, first=(q == 0))
    gather(a, emit, 136)
    for mat in range(2):
        for sp in range(1, 8):
            for e in range(8):
                a(f"v_add_f32 v{G+64*mat+e}, v{G+64*mat+e}, v{G+64*mat+8*sp+e}")
    c1 = 0.044715
    c2 = -2.0 * 0.7978845608028654 * 1.4426950408889634
    a(f"s_mov_b32 s12, {f32hex(c1)}")
    a(f"s_mov_b32 s13, {f32hex(c2)}")
    for e in range(8):
        g, u, t = G+e, G+64+e, 16+e
        rne(a, g, g)
        rne(a, u, u)
        a(f"v_mul_f32 v{t}, v{g}, v{g}")
        a(f"v_mul_f32 v{t}, v{t}, v{g}")
        a(f"v_fma_f32 v{t}, v{t}, s12, v{g}")
        a(f"v_mul_f32 v{t}, s13, v{t}")
        a(f"v_exp_f32 v{t}, v{t}")
        a("s_nop 0")
        a(f"v_add_f32 v{t}, 1.0, v{t}")
        a(f"v_rcp_f32 v{t}, v{t}")
        a("s_nop 0")
        a(f"v_mul_f32 v{t}, v{t}, v{g}")
        rne(a, t, t)
        a(f"v_mul_f32 v{t}, v{t}, v{u}")
    for q in range(4):
        a(f"v_cvt_pk_bf16_f32 v{24+q}, v{16+2*q}, v{17+2*q}")
    stamp(a, 6)
    af_via_lds(a, 24, L_AF + 1024)
    if DN10:
        lds_wait(a, L_DNL, 1)
        stamp(a, 8)
        wjob_consume(a, L_WT + 0x10000)
    else:
        wjob_voff(a, 2048)
        lds_wait(a, L_GO, 1)
        a(f"s_mul_i32 s11, s8, {128*2048}")
        a("s_lshl_b32 s12, s9, 8")
        a("s_add_u32 s11, s11, s12")
        wjob_issue(a, 2048, 11, L_WT + 0x8000, pace=TPACE)
        a("s_waitcnt vmcnt(0)")
        stamp(a, 8)
        wjob_consume(a, L_WT + 0x8000)
    a("s_lshl_b32 s14, s9, 17")
    a("s_add_u32 s15, s8, 32")
    a("s_lshl_b32 s12, s15, 11")
    a("s_add_u32 s14, s14, s12")
    a(f"s_add_u32 s14, s14, {SP}")
    a("s_lshl_b32 s12, s9, 6")
    a("s_add_u32 s15, s15, s12")
    a("s_lshl_b32 s15, s15, 2")
    a(f"s_add_u32 s15, s15, {FS}")
    wjob_store(a, 14, 512, 15, flag=not FDIRECT, t12=bool(T12))
    stamp(a, 7)
    stamp_flush(a)
    a("s_endpgm")

    a.label("L_w8")
    mk_srd(a, SRD_W, 22, 1024*4096*2)
    a("s_lshr_b32 s8, s2, 3")
    a("s_and_b32 s9, s2, 7")
    a("s_lshl_b32 s10, s9, 8")
    ln_issue(a, 10)
    wjob_voff(a, 8192)
    a(f"s_mul_i32 s11, s9, {128*8192}")
    a("s_lshl_b32 s12, s8, 8")
    a("s_add_u32 s11, s11, s12")
    def mid_q():
        a(f"s_add_u32 s{S_TAG}, s{S_TAG}, 1")
        a(f"s_waitcnt vmcnt({min(QPACE,32)})")
        stamp(a, 1)
        ln_compute(a)
        stamp(a, 2)
    wjob_issue(a, 8192, 11, L_WT, pace=QPACE, barrier=True, mid=mid_q, bar_at=32)
    a("s_waitcnt vmcnt(0)")
    if GATE_GU:
        lds_inc(a, L_QJ)
    if STRIP == 1:
        a("s_endpgm")
    stamp(a, 3)
    wjob_consume(a, L_WT)
    a("s_lshl_b32 s14, s9, 16")
    a("s_lshl_b32 s15, s8, 9")
    a("s_add_u32 s14, s14, s15")
    a(f"s_add_u32 s14, s14, {QP}")
    a("s_lshl_b32 s15, s2, 2")
    a(f"s_add_u32 s15, s15, {FQ}")
    wjob_store(a, 14, 16384, 15, flag=not NOPOLL)
    if NOBAR: mark_wait(a)
    if QWAIT:
        lds_inc(a, L_QJ)
    stamp(a, 4)
    if STRIP:
        a("s_endpgm")
    a("s_lshr_b32 s8, s96, 3")
    a("s_and_b32 s9, s96, 7")
    mk_srd(a, SRD_W, 24, 4096*1024*2)
    wjob_voff(a, 2048)
    a("s_lshl_b32 s12, s8, 16")
    a(f"s_add_u32 s12, s12, {OREC}")
    a("v_lshlrev_b32 v6, 10, v0")
    a("v_add_u32 v6, 512, v6")
    if OPAR:
        lds_wait(a, L_REC, GOREC)
        stamp(a, 8)
        lds_inc(a, L_GO)
        a(f"s_mul_i32 s11, s8, {128*2048}")
        a("s_lshl_b32 s13, s9, 8")
        a("s_add_u32 s11, s11, s13")
        wjob_issue(a, 2048, 11, L_WT, pace=TPACE)
        a("s_waitcnt vmcnt(0)")
        stamp(a, 5)
        lds_wait(a, L_OAF, 8)
        stamp(a, 6)
        a("v_and_b32 v2, 3, v0")
        a("v_lshlrev_b32 v2, 8, v2")
        a("v_lshrrev_b32 v3, 4, v0")
        a("v_lshlrev_b32 v3, 4, v3")
        a("v_add_u32 v2, v2, v3")
        for tb in range(4):
            a(f"ds_read_b128 {vr(W_AF+4*tb)}, v2 offset:{L_AF + 64*tb}")
        a("s_waitcnt lgkmcnt(0)")
    else:
        a("s_lshl_b32 s10, s8, 8")
        a(f"s_add_u32 s10, s10, {FO}")
        a("v_lshlrev_b32 v7, 2, v0")
        if TEARLY:
            lds_wait(a, L_ISS if TEARLY <= 8 else L_OCNT, TEARLY if TEARLY <= 8 else TEARLY - 8)
        else:
            lds_wait(a, L_REC, 8)
        if not NOSYNC and not TEARLY:
            lp = a.uniq("pa"); dn = a.uniq("pad")
            a(f"s_mov_b32 s{S_TMO}, 100000")
            a.label(lp)
            if OFLAG:
                a(f"buffer_load_dword v138, v7, {srd(SRD_WS)}, s10 offen sc1")
            else:
                a(f"buffer_load_dwordx4 {vr(136)}, v6, {srd(SRD_WS)}, s12 offen sc1")
            a("s_waitcnt vmcnt(0)")
            a(f"v_cmp_eq_u32 vcc, s{S_TAG}, v138")
            a("s_nop 3")
            a("s_bcnt1_i32_b64 s4, vcc")
            a(f"s_cmp_ge_u32 s4, {THR}")
            a(f"s_cbranch_scc1 {dn}")
            a(f"s_sleep {PSLEEP}")
            a(f"s_sub_u32 s{S_TMO}, s{S_TMO}, 1")
            a(f"s_cmp_lg_u32 s{S_TMO}, 0")
            a(f"s_cbranch_scc1 {lp}")
            a.label(dn)
        stamp(a, 8)
        lds_inc(a, L_GO)
        a(f"s_mul_i32 s11, s8, {128*2048}")
        a("s_lshl_b32 s13, s9, 8")
        a("s_add_u32 s11, s11, s13")
        wjob_issue(a, 2048, 11, L_WT, pace=TPACE)
        if TEARLY:
            lds_wait(a, L_REC, 8)
        if MASKG:
            lp = a.uniq("pa"); dn = a.uniq("pad")
            a(f"s_mov_b32 s{S_TMO}, 100000")
            a.label(lp)
            a(f"buffer_load_dwordx4 {vr(136)}, v6, {srd(SRD_WS)}, s12 offen sc1")
            a("s_waitcnt vmcnt(0)")
            a(f"v_cmp_eq_u32 vcc, s{S_TAG}, v138")
            a("s_nop 3")
            a("s_bcnt1_i32_b64 s4, vcc")
            a(f"s_cmp_ge_u32 s4, {THR2}")
            a(f"s_cbranch_scc1 {dn}")
            a(f"s_sleep {PSLEEP}")
            a(f"s_sub_u32 s{S_TMO}, s{S_TMO}, 1")
            a(f"s_cmp_lg_u32 s{S_TMO}, 0")
            a(f"s_cbranch_scc1 {lp}")
            a.label(dn)
            stamp(a, 5)
            a("v_lshrrev_b32 v2, 4, v0")
            a("v_lshlrev_b32 v2, 14, v2")
            a("v_and_b32 v3, 15, v0")
            a("v_lshl_add_u32 v2, v3, 5, v2")
            FM = [16 + 2*i for i in range(12)] + [44, 46, 48, 50]
            def pas(fl, masked):
                a(f"buffer_load_dwordx4 {vr(136)}, v6, {srd(SRD_WS)}, s12 offen sc1")
                for s_ in range(16):
                    sk = a.uniq("sk")
                    if masked:
                        a(f"s_mov_b64 exec, s[{FM[s_]}:{FM[s_]+1}]")
                        a(f"s_cbranch_execz {sk}")
                    a(f"s_add_u32 s5, s12, {s_*1024}")
                    a(f"buffer_load_dwordx4 {vr(8+8*s_)}, v2, {srd(SRD_WS)}, s5 offen {fl}")
                    a(f"buffer_load_dwordx4 {vr(8+8*s_+4)}, v2, {srd(SRD_WS)}, s5 offen offset:16 {fl}")
                    if masked:
                        a.label(sk)
                a("s_mov_b64 exec, -1")
                a("s_waitcnt vmcnt(0)")
                a(f"v_cmp_ne_u32 s[6:7], s{S_TAG}, v138")
                for s_ in range(16):
                    tag_check(a, 8+8*s_, 140, 141, 142, first=True)
                    tag_check(a, 8+8*s_+4, 140, 141, 142)
                    a(f"v_cmp_ne_u32 s[{FM[s_]}:{FM[s_]+1}], 0, v140")
                a("s_nop 3")
                for s_ in range(16):
                    a(f"s_or_b64 s[6:7], s[6:7], s[{FM[s_]}:{FM[s_]+1}]")
                a("s_cmp_eq_u64 s[6:7], 0")
            lp = a.uniq("og"); dn = a.uniq("ogd")
            pas("", False)
            a(f"s_cbranch_scc1 {dn}")
            a(f"s_mov_b32 s{S_TMO}, 100000")
            a.label(lp)
            pas("sc1", True)
            a(f"s_cbranch_scc1 {dn}")
            a(f"s_sub_u32 s{S_TMO}, s{S_TMO}, 1")
            a(f"s_cmp_lg_u32 s{S_TMO}, 0")
            a(f"s_cbranch_scc1 {lp}")
            a.label(dn)
            a("v_mov_b32 v138, v136")
            row_reduce_max(a, 138)
            a("v_sub_f32 v136, v136, v138")
            a("v_exp_f32 v136, v136")
            a("s_nop 0")
            a("v_mul_f32 v137, v136, v137")
            row_reduce_add(a, 137)
            a("v_rcp_f32 v137, v137")
            a("s_nop 0")
            a("v_mul_f32 v136, v136, v137")
            a("s_nop 1")
            for s_ in range(16):
                a(f"v_mov_b32_dpp v{140+s_}, v136 row_newbcast:{s_} row_mask:0xf bank_mask:0xf")
        else:
            if OFLAG:
                poll_flags(a, 7, 10, 138)
                poll_flags(a, 6, 12, 136, width=4, tagreg_idx=2)
            else:
                poll_flags(a, 6, 12, 136, width=4, tagreg_idx=2)
            stamp(a, 5)
            a("v_mov_b32 v138, v136")
            row_reduce_max(a, 138)
            a("v_sub_f32 v136, v136, v138")
            a("v_exp_f32 v136, v136")
            a("s_nop 0")
            a("v_mul_f32 v137, v136, v137")
            row_reduce_add(a, 137)
            a("v_rcp_f32 v137, v137")
            a("s_nop 0")
            a("v_mul_f32 v136, v136, v137")
            a("v_lshrrev_b32 v2, 4, v0")
            a("v_lshlrev_b32 v2, 14, v2")
            a("v_and_b32 v3, 15, v0")
            a("v_lshl_add_u32 v2, v3, 5, v2")
            for s in range(16):
                a(f"v_mov_b32_dpp v{140+s}, v136 row_newbcast:{s} row_mask:0xf bank_mask:0xf")
            def emit(fl):
                for s in range(16):
                    a(f"s_add_u32 s5, s12, {s*1024}")
                    a(f"buffer_load_dwordx4 {vr(8+8*s)}, v2, {srd(SRD_WS)}, s5 offen {fl}")
                    a(f"buffer_load_dwordx4 {vr(8+8*s+4)}, v2, {srd(SRD_WS)}, s5 offen offset:16 {fl}")
                for q in range(32):
                    a(f"s_waitcnt vmcnt({31-q})")
                    tag_check(a, 8+4*q, 136, 137, 138, first=(q == 0))
            gather(a, emit, 136)
        for e in range(8):
            a(f"v_mul_f32 v{8+e}, v{8+e}, v140")
        for s in range(1, 16):
            for e in range(8):
                a(f"v_fmac_f32 v{8+e}, v{8+8*s+e}, v{140+s}")
        for q in range(4):
            a(f"v_cvt_pk_bf16_f32 v{24+q}, v{8+2*q}, v{9+2*q}")
        stamp(a, 6)
        af_via_lds(a, 24, L_AF)
    wjob_consume(a, L_WT)
    a("s_lshl_b32 s14, s9, 17")
    a("s_lshl_b32 s12, s8, 11")
    a("s_add_u32 s14, s14, s12")
    a(f"s_add_u32 s14, s14, {SP}")
    a("s_lshl_b32 s12, s9, 6")
    a("s_add_u32 s15, s8, s12")
    a("s_lshl_b32 s15, s15, 2")
    a(f"s_add_u32 s15, s15, {FS}")
    wjob_store(a, 14, 512, 15, flag=not FDIRECT, t12=bool(T12))
    stamp(a, 7)
    stamp_flush(a)
    a("s_endpgm")

    a.label("L_comm")
    if DBGT:
        a("s_memrealtime s[98:99]")
    a("v_mov_b32 v2, 0")
    a("v_lshlrev_b32 v3, 2, v0")
    a("ds_write_b32 v3, v2")
    a("s_waitcnt lgkmcnt(0)")
    if not NOBAR: a("s_barrier")
    a(f"s_add_u32 s{S_TAG}, s{S_TAG}, 1")
    if NOBAR:
        a(f"v_mov_b32 v3, s{S_TAG}")
        a(f"ds_write_b32 v2, v3 offset:{L_MARK}")
    if STRIP in (1, 2):
        a("s_endpgm")
    a("s_lshr_b32 s8, s96, 4")
    a("s_and_b32 s8, s8, 3")
    a("s_lshr_b32 s9, s96, 6")
    a("s_lshl_b32 s12, s8, 8")
    a(f"s_add_u32 s12, s12, {FQ}")
    if NOPOLL:
        lds_wait(a, L_KISS, QTHR)
    else:
        if QWAIT:
            lds_wait(a, L_QJ, 1)
        a("v_lshlrev_b32 v6, 2, v0")
        poll_flags(a, 6, 12, 7)
    stamp(a, 1)
    if NOGATH:
        a("s_endpgm")
    a("s_lshl_b32 s12, s9, 14")
    a("s_lshl_b32 s13, s8, 12")
    a("s_add_u32 s12, s12, s13")
    a(f"s_add_u32 s12, s12, {QP}")
    a("v_lshlrev_b32 v2, 4, v0")
    def emit(fl):
        for sp in range(8):
            a(f"s_add_u32 s5, s12, {sp*65536}")
            for q in range(4):
                a(f"buffer_load_dwordx4 {vr(8+16*sp+4*q)}, v2, {srd(SRD_WS)}, s5 offen offset:{1024*q} {fl}")
        for q in range(32):
            a(f"s_waitcnt vmcnt({31-q})")
            tag_check(a, 8+4*q, 136, 137, 138, first=(q == 0))
    gather(a, emit, 136)
    for sp in range(1, 8):
        for e in range(16):
            a(f"v_add_f32 v{8+e}, v{8+e}, v{8+16*sp+e}")
    for q in range(8):
        a(f"v_cvt_pk_bf16_f32 v{24+q}, v{8+2*q}, v{9+2*q}")
    a("v_lshrrev_b32 v2, 5, v0")
    a("v_lshlrev_b32 v2, 8, v2")
    a("v_and_b32 v3, 15, v0")
    a("v_lshl_add_u32 v2, v3, 4, v2")
    a("v_bfe_u32 v3, v0, 4, 1")
    a("v_lshl_add_u32 v2, v3, 3, v2")
    for q in range(4):
        a(f"ds_write_b64 v2, v[{24+2*q}:{25+2*q}] offset:{L_QS + 512*q}")
    lds_inc(a, L_QRDY)
    stamp(a, 2)
    if STRIP:
        a("s_endpgm")
    a(f"s_cmp_lt_u32 s2, {128 if F128 else 32}")
    a("s_cbranch_scc1 L_final")
    stamp_flush(a)
    a("s_endpgm")
    a.label("L_final")
    if F128:
        final128(a)
    else:
        final32(a)
    a("s_mov_b64 exec, -1")
    a("s_cmp_lg_u32 s2, 0")
    a("s_cbranch_scc1 L_end")
    a("s_mov_b64 exec, 1")
    a("v_mov_b32 v2, 0")
    a(f"v_mov_b32 v3, s{S_TAG}")
    a(f"buffer_store_dword v3, v2, {srd(SRD_WS)}, 0 offen sc1")
    if DBGT:
        a("s_memrealtime s[94:95]")
        a("s_waitcnt lgkmcnt(0)")
        a("s_sub_u32 s94, s94, s98")
        mk_srd(a, 84, 36, 256)
        a("v_mov_b32 v3, s94")
        a("buffer_store_dword v3, v2, s[84:87], 0 offen")
    a.label("L_end")
    a("s_endpgm")

    out += a.l
    out += ['.section .rodata,"a"', ".p2align 6", f".amdhsa_kernel {NAME}",
            "  .amdhsa_next_free_vgpr 168", "  .amdhsa_next_free_sgpr 100", "  .amdhsa_accum_offset 168",
            "  .amdhsa_group_segment_fixed_size 0", "  .amdhsa_kernarg_size 96", "  .amdhsa_user_sgpr_count 2",
            "  .amdhsa_user_sgpr_kernarg_segment_ptr 1", "  .amdhsa_system_sgpr_workgroup_id_x 1",
            ".end_amdhsa_kernel"]
    open(path, "w").write("\n".join(out) + "\n")

def wjob_consume_dyn(a):
    def rd(tb, T):
        for i in range(8):
            a(f"ds_read_b128 {vr(T+4*i)}, v3 offset:{(tb*8+i)*1024}")
    rd(0, W_T0)
    for tb in range(4):
        T = W_T0 if tb % 2 == 0 else W_T1
        if tb < 3:
            rd(tb+1, W_T1 if tb % 2 == 0 else W_T0)
            a("s_waitcnt lgkmcnt(8)")
        else:
            a("s_waitcnt lgkmcnt(0)")
        for w in range(4):
            TB = W_TB + 8*(w % 2)
            for p in range(4):
                a(f"v_perm_b32 v{TB+p}, v{T+4*(2*p+1)+w}, v{T+4*(2*p)+w}, s{S_SELLO}")
            for p in range(4):
                a(f"v_perm_b32 v{TB+4+p}, v{T+4*(2*p+1)+w}, v{T+4*(2*p)+w}, s{S_SELHI}")
            a("s_nop 1")
            for h in range(2):
                t = 2*w + h
                c = "0" if tb == 0 else vr(W_ACC+4*t)
                a(f"v_mfma_f32_16x16x32_bf16 {vr(W_ACC+4*t)}, {vr(W_AF+4*tb)}, {vr(TB+4*h)}, {c}")

if __name__ == "__main__":
    depth = int(sys.argv[2]) if len(sys.argv) > 2 else 8
    STAMPS = "stamps" in sys.argv
    for x in sys.argv[3:]:
        if "=" in x:
            k, v = x.split("=")
            globals()[k] = int(v) if v.lstrip('-').isdigit() else v.replace('_', ' ').strip()
    gen(sys.argv[1], depth)
```
